```python
import torch

def _softmax(x, axis=-1):
    return torch.softmax(x, dim=axis)
def _gelu(x):
    return torch.nn.functional.gelu(x, approximate="tanh")
def _silu(x):
    return torch.nn.functional.silu(x)
def _sigmoid(x):
    return torch.sigmoid(x)
def _layernorm(x, axis=-1, eps=1e-5):
    m = x.mean(dim=axis, keepdim=True)
    v = x.var(dim=axis, keepdim=True, unbiased=False)
    return (x - m) / torch.sqrt(v + eps)
def _scatter_add(tgt, idx, src, axis=0):
    return tgt.clone().index_add_(axis, idx, src)
def _segment_sum(src, seg, n):
    out = torch.zeros((n,) + src.shape[1:], dtype=src.dtype)
    return out.index_add_(0, seg, src)
def _pad(x, pw):
    flat = tuple(v for pair in reversed(pw) for v in pair)
    return torch.nn.functional.pad(x, flat)

kernel_name = 'interleave_layers__linear_kernel_hedgehog__geglu_ffn__prompt'

def setup_inputs():

    _w = (lambda a: (lambda t: t.to(torch.bfloat16) if t.is_floating_point() else t)(torch.as_tensor(a)))
    def _A_setup():
        B, S, D, H = 1, 2048, 1024, 32
        Dh = D // H
        return {
            "x": _w((lambda *s: torch.randn(*s, dtype=torch.bfloat16) * 0.05)(B, S, D)),
            "wqkv": _w((lambda *s: torch.randn(*s, dtype=torch.bfloat16) * 0.2)(D, 3 * D)),
            "w_phi": _w((lambda *s: torch.randn(*s, dtype=torch.bfloat16) * 0.2)(H, Dh, Dh) * (Dh ** -0.5)),
            "wo": _w((lambda *s: torch.randn(*s, dtype=torch.bfloat16) * 0.05)(D, D)),
        }
    _A_in = _A_setup()

    def _B_setup():
        B, S, D, F = 1, 2048, 1024, 3584
        return {
            "x": _w((lambda *s: torch.randn(*s, dtype=torch.bfloat16) * 0.05)(B, S, D)),
            "w_gate": _w((lambda *s: torch.randn(*s, dtype=torch.bfloat16) * 0.05)(D, F)),
            "w_up": _w((lambda *s: torch.randn(*s, dtype=torch.bfloat16) * 0.05)(D, F)),
            "w_down": _w((lambda *s: torch.randn(*s, dtype=torch.bfloat16) * 0.05)(F, D)),
        }
    _B_in = _B_setup()

    return {
        "A_x": _A_in["x"],
        "A_wqkv": _A_in["wqkv"],
        "A_w_phi": _A_in["w_phi"],
        "A_wo": _A_in["wo"],
        "B_x": _B_in["x"],
        "B_w_gate": _B_in["w_gate"],
        "B_w_up": _B_in["w_up"],
        "B_w_down": _B_in["w_down"],
    }

def reference(A_x, A_wqkv, A_w_phi, A_wo, B_x, B_w_gate, B_w_up, B_w_down):
    def _A_ref(x, wqkv, w_phi, wo):
        B, S, D = x.shape
        H = 32; Dh = D // H
        qkv = (lambda x, *d: x.permute(*d))((x @ wqkv).reshape(B, S, 3, H, Dh), 2, 0, 3, 1, 4)
        q, k, v = qkv[0], qkv[1], qkv[2]
        pq = torch.einsum("bhsd,hdf->bhsf", q, w_phi)
        pk = torch.einsum("bhsd,hdf->bhsf", k, w_phi)
        phi_q = torch.concatenate([_softmax(pq, axis=-1), _softmax(-pq, axis=-1)], axis=-1)
        phi_k = torch.concatenate([_softmax(pk, axis=-1), _softmax(-pk, axis=-1)], axis=-1)
        kv = torch.einsum("bhsf,bhsd->bhfd", phi_k, v)
        z  = torch.einsum("bhsf->bhf", phi_k)
        num = torch.einsum("bhqf,bhfd->bhqd", phi_q, kv)
        den = torch.einsum("bhqf,bhf->bhq", phi_q, z)[..., None] + 1e-6
        o = num / den
        return (lambda x, *d: x.permute(*d))(o, 0, 2, 1, 3).reshape(B, S, D) @ wo

    def _B_ref(x, w_gate, w_up, w_down):
        return (_gelu(x @ w_gate) * (x @ w_up)) @ w_down

    x = A_x
    x = x + _A_ref(_layernorm(x, axis=-1), A_wqkv, A_w_phi, A_wo)
    x = x + _B_ref(_layernorm(x, axis=-1), B_w_gate, B_w_up, B_w_down)
    x = x + _A_ref(_layernorm(x, axis=-1), A_wqkv, A_w_phi, A_wo)
    x = x + _B_ref(_layernorm(x, axis=-1), B_w_gate, B_w_up, B_w_down)
    return x
```

```python
def v(i, n=1):
    return f"v{i}" if n == 1 else f"v[{i}:{i+n-1}]"
def a(i, n=1):
    return f"a{i}" if n == 1 else f"a[{i}:{i+n-1}]"
def s(i, n=1):
    return f"s{i}" if n == 1 else f"s[{i}:{i+n-1}]"

class Alloc:
    def __init__(self, start, limit, kind):
        self.p = start; self.limit = limit; self.kind = kind; self.hi = start
        self.names = {}
    def get(self, n=1, align=1, name=None):
        p = (self.p + align - 1) // align * align
        assert p + n <= self.limit, f"out of {self.kind} regs: need {p+n} > {self.limit} ({name})"
        self.p = p + n
        self.hi = max(self.hi, self.p)
        if name: self.names[name] = (p, n)
        return p
    def mark(self): return self.p
    def reset(self, m): self.p = m

class Kernel:
    def __init__(self, name):
        self.name = name
        self.lines = []
        self.nlabel = 0
        self.vgpr = 256; self.agpr = 0; self.sgpr = 96
    def I(self, txt, comment=None):
        self.lines.append("    " + txt + (f"   ; {comment}" if comment else ""))
    def C(self, txt):
        self.lines.append("    ; " + txt)
    def label(self, base="L"):
        self.nlabel += 1
        return f"{self.name}_{base}{self.nlabel}"
    def L(self, lab):
        self.lines.append(lab + ":")
    def raw(self, txt):
        self.lines.append(txt)
    def srd(self, d, base, nbytes, off=0):
        if off:
            self.I(f"s_add_u32 s{d}, s{base}, {hex(off)}")
            self.I(f"s_addc_u32 s{d+1}, s{base+1}, 0")
        else:
            self.I(f"s_mov_b32 s{d}, s{base}")
            self.I(f"s_mov_b32 s{d+1}, s{base+1}")
        self.I(f"s_mov_b32 s{d+2}, {hex(nbytes)}")
        self.I(f"s_mov_b32 s{d+3}, 0x00020000")
    def text(self):
        out = [f".globl {self.name}", ".p2align 8", f".type {self.name},@function", f"{self.name}:"]
        out += self.lines
        out.append("    s_endpgm")
        return "\n".join(out) + "\n"
    def desc(self):
        acc = (self.vgpr + 3) // 4 * 4
        nfv = acc + self.agpr if self.agpr else self.vgpr
        assert nfv <= 512 and acc <= 256
        return (f".p2align 6\n.amdhsa_kernel {self.name}\n"
                f"  .amdhsa_next_free_vgpr {nfv}\n"
                f"  .amdhsa_next_free_sgpr {self.sgpr}\n"
                f"  .amdhsa_accum_offset {acc}\n"
                f"  .amdhsa_group_segment_fixed_size 0\n"
                f"  .amdhsa_kernarg_size 88\n"
                f"  .amdhsa_user_sgpr_count 2\n"
                f"  .amdhsa_user_sgpr_kernarg_segment_ptr 1\n"
                f"  .amdhsa_system_sgpr_workgroup_id_x 1\n"
                f".end_amdhsa_kernel\n")

def build_file(header_lines, launches, kernels):
    out = list(header_lines)
    for (k, g, b, lds) in launches:
        out.append(f"; @launch kernel={k} grid=({g},1,1) block=({b},1,1) lds={lds}")
    out.append('.amdgcn_target "amdgcn-amd-amdhsa--gfx950"')
    out.append(".text")
    txt = "\n".join(out) + "\n"
    for k in kernels:
        txt += k.text()
    txt += '.section .rodata,"a"\n'
    for k in kernels:
        txt += k.desc()
    return txt

def interleave(main, fill, start=0, per=1):
    out = []; fi = 0
    for i, m in enumerate(main):
        out.append(m)
        if i >= start:
            for _ in range(per):
                if fi < len(fill):
                    out.append(fill[fi]); fi += 1
    out += fill[fi:]
    return out
```

```python
import re
REG = re.compile(r'^(-?)(?:abs\()?\|?([vsa])(?:(\d+)|\[(\d+):(\d+)\])\|?\)?$')
TRANS = ("v_exp_f32", "v_log_f32", "v_rcp_f32", "v_rsq_f32", "v_sqrt_f32", "v_sin_f32", "v_cos_f32", "v_rcp_iflag_f32")

def regs(tok):
    tok = tok.strip()
    if tok in ("vcc",): return {("s", 106), ("s", 107)}
    if tok == "vcc_lo": return {("s", 106)}
    if tok == "exec": return {("s", 126), ("s", 127)}
    if tok == "m0": return {("s", 124)}
    m = REG.match(tok)
    if not m: return set()
    k = m.group(2)
    if m.group(3) is not None: return {(k, int(m.group(3)))}
    return {(k, i) for i in range(int(m.group(4)), int(m.group(5)) + 1)}

def split_ops(s):
    out = []; d = 0; cur = ""
    for ch in s:
        if ch == "[": d += 1
        if ch == "]": d -= 1
        if ch == "," and d == 0: out.append(cur); cur = ""
        else: cur += ch
    if cur.strip(): out.append(cur)
    return [o.strip() for o in out]

class Ins:
    def __init__(self, text):
        t = text.split(";")[0].strip()
        self.text = text
        p = t.split(None, 1)
        self.mn = p[0]
        rest = p[1] if len(p) > 1 else ""
        ops = split_ops(rest)
        if ops:
            last = ops[-1].split()
            self.mods = " ".join(last[1:])
            ops[-1] = last[0] if last else ""
        else: self.mods = ""
        self.ops = ops
        mn = self.mn
        self.mfma = mn.startswith("v_mfma")
        self.valu = mn.startswith("v_") and not self.mfma
        self.trans = any(mn.startswith(x) for x in TRANS)
        self.vmem = mn.startswith("buffer_") or mn.startswith("global_")
        self.ds = mn.startswith("ds_")
        self.salu = mn.startswith("s_")
        self.dpp = "_dpp" in mn or "quad_perm" in self.mods or "row_" in self.mods
        self.perml = mn.startswith("v_permlane")
        self.rfl = mn.startswith("v_readfirstlane") or mn.startswith("v_readlane")
        self.lds_dma = self.vmem and (" lds" in (" " + self.mods) or "load_lds" in mn)
        self.w = set(); self.r = set(); self.srcc = set(); self.ab = set()
        R = [regs(o) for o in ops]
        if self.mfma:
            self.w = R[0]; self.ab = R[1] | R[2]; self.srcc = R[3] if len(R) > 3 else set(); self.r = self.ab | self.srcc
            self.passes = 8 if "32x32" in mn else 4
        elif self.valu:
            if self.perml:
                self.w = R[0] | R[1]; self.r = R[0] | R[1]
            elif mn.startswith("v_cmp"):
                self.w = R[0]; self.r = set().union(*R[1:])
            elif "_co_" in mn or mn.startswith("v_div_scale") or mn.startswith("v_mad_u64"):
                self.w = R[0] | R[1]; self.r = set().union(*R[2:])
            else:
                self.w = R[0]; self.r = set().union(*R[1:]) if len(R) > 1 else set()
                if mn.startswith("v_fmac") or mn.startswith("v_dot2c") or mn.startswith("v_pk_fmac") or "_dpp" in mn or "sdwa" in mn or mn.startswith("v_writelane"):
                    self.r |= R[0]
                if mn.startswith("v_cndmask") and len(ops) == 3: self.r |= regs("vcc")
        elif self.vmem:
            if "store" in mn or "atomic" in mn:
                self.r = set().union(*R); self.data = R[0] if mn.startswith("buffer") else R[1]
            elif self.lds_dma:
                self.r = set().union(*R) | regs("m0")
            elif mn.startswith("buffer_wbl2") or mn.startswith("buffer_inv"):
                pass
            else:
                self.w = R[0]; self.r = set().union(*R[1:])
                if "d16" in mn: self.r |= R[0]
        elif self.ds:
            if "read" in mn or "permute" in mn or "swizzle" in mn:
                self.w = R[0]; self.r = set().union(*R[1:]) if len(R) > 1 else set()
            else:
                self.r = set().union(*R)
        elif self.salu:
            if mn.startswith("s_cmp") or mn.startswith("s_cbranch") or mn in ("s_branch", "s_barrier", "s_nop", "s_waitcnt", "s_endpgm", "s_setprio", "s_sleep", "s_bitcmp1_b32", "s_bitcmp0_b32"):
                self.r = set().union(*R) if R else set()
            else:
                self.w = R[0] if R else set(); self.r = set().union(*R[1:]) if len(R) > 1 else set()
                if "saveexec" in mn: self.w |= regs("exec")
        self.wide_store = self.vmem and "store" in mn and ("x4" in mn or "x3" in mn)
        self.states = 1
        if mn == "s_nop": self.states = int(ops[0], 0) + 1

def vg(S): return {x for x in S if x[0] in "va"}
def sg(S): return {x for x in S if x[0] == "s"}

def need(p, c):
    n = 0
    if p.mfma:
        big = 12 if p.passes == 8 else 8
        ov = 10 if p.passes == 8 else 6
        if c.mfma:
            if p.w & c.ab: n = max(n, big)
            if p.w & c.srcc and not (p.w == c.srcc and p.passes == c.passes): n = max(n, ov)
            if p.w & c.w and not (p.w == c.w and p.w == c.srcc) and not (p.w & c.srcc): n = max(n, ov)
        elif c.valu or c.vmem or c.ds:
            if p.w & (c.r | c.w): n = max(n, big)
        if c.valu and (p.srcc & c.w): n = max(n, 7 if p.passes == 8 else 3)
    if p.valu:
        pv = vg(p.w); ps = sg(p.w)
        if c.mfma and pv & c.r: n = max(n, 2)
        if p.trans and (c.valu or c.vmem or c.ds) and not c.trans and pv & c.r: n = max(n, 1)
        if p.trans and c.trans and pv & c.r: n = max(n, 1)
        if (c.perml or c.dpp) and pv & c.r: n = max(n, 2)
        if c.rfl and pv & c.r: n = max(n, 1)
        if ps:
            if c.valu and ps & c.r: n = max(n, 4 if c.mn.startswith("v_readlane") or c.mn.startswith("v_writelane") else 2)
            if c.vmem and ps & c.r: n = max(n, 5)
            if c.salu and ps & c.r: n = max(n, 1)
        if ("sdwa" in p.mn or "op_sel" in p.mods and not p.mn.startswith("v_pk")) and c.valu and pv & c.r: n = max(n, 1)
    if p.salu and ("s", 124) in p.w and c.lds_dma: n = max(n, 1)
    if p.wide_store:
        if p.data & c.w: n = max(n, 2 if c.valu else 1)
    return n

def run(lines):
    out = []; hist = []
    nins = 0
    for raw in lines:
        for ln in raw.split("\n"):
            t = ln.split(";")[0].strip()
            if not t or t.endswith(":") or t.startswith("."):
                out.append(ln); continue
            c = Ins(ln)
            req = 0
            dist = 0
            for p in reversed(hist):
                n = need(p, c)
                if n > dist: req = max(req, n - dist)
                dist += p.states
                if dist > 20: break
            if req > 0:
                nop = Ins(f"s_nop {req-1}")
                out.append(f"    s_nop {req-1}   ; hz"); hist.append(nop); nins += 1
            out.append(ln); hist.append(c)
            if len(hist) > 40: hist = hist[-30:]
            if c.mn in ("s_endpgm", "s_branch"): hist = []
    return out, nins
```

```python
import sys
from dsl import *
import hazard

MB = 1 << 20
XB0, XB1, OB, PHIQ, ACT = 0, 4*MB, 8*MB, 12*MB, 20*MB
KVP = 35*MB; ZP = 39*MB; ST0 = 39*MB + 256*1024; ST1 = 39*MB + 512*1024; CS = 39*MB + 768*1024
CS_Q, CS_G, CS_U = 0, 12288, 12288 + 14336
SLAB = 2048 * 64
WT = "sc0 sc1"
LOG2E = 0x3fb8aa3b
ARG = dict(x=0, wqkv=8, wphi=16, wo=24, wg=40, wu=48, wd=56, out=64, dbg=72, ws=80)
STAMP = False

def place(m, items):
    out = []; by = {}
    for g, t in items: by.setdefault(min(g, len(m) - 1), []).append(t)
    out += by.get(-1, [])
    for i, x in enumerate(m):
        out.append(x); out += by.get(i, [])
    return out

def mfma(d, a_, b_, c=None):
    return f"v_mfma_f32_16x16x32_bf16 {v(d,4)}, {v(a_,4)}, {v(b_,4)}, {v(c,4) if c is not None else 0}"

def emit(k, seq):
    for x in seq: k.I(x)

def cross_g2(k, AB, op):
    for A, B, t in AB: k.I(f"v_permlane32_swap_b32 v{A}, v{B}")
    for A, B, t in AB: k.I(f"{op} v{A}, v{A}, v{B}")
    for A, B, t in AB: k.I(f"v_mov_b32 v{t}, v{A}")
    for A, B, t in AB: k.I(f"v_permlane16_swap_b32 v{A}, v{t}")
    for A, B, t in AB: k.I(f"{op} v{A}, v{A}, v{t}")
    for A, B, t in AB: k.I(f"v_mov_b32 v{B}, v{A}")
    for A, B, t in AB: k.I(f"v_permlane32_swap_b32 v{A}, v{B}")

def stamp_begin(k, sreg):
    if STAMP: k.I(f"s_memrealtime s[{sreg}:{sreg+1}]")

def stamp_end(k, s0, s1, sdbg, s_w, nw, vt):
    if not STAMP: return
    k.I("s_waitcnt vmcnt(0)")
    k.I(f"s_memrealtime s[{s1}:{s1+1}]")
    k.I(f"s_load_dwordx2 s[{sdbg}:{sdbg+1}], s[0:1], {ARG['dbg']}")
    k.I("s_waitcnt lgkmcnt(0)")
    k.I(f"s_mov_b32 s{sdbg+2}, 0x100000"); k.I(f"s_mov_b32 s{sdbg+3}, 0x00020000")
    for i, r in enumerate([s0, s0+1, s1, s1+1]): k.I(f"v_mov_b32 v{vt+i}, s{r}")
    k.I(f"s_lshl_b32 s{s1}, s2, 3"); k.I(f"s_add_u32 s{s1}, s{s1}, s{s_w}"); k.I(f"s_lshl_b32 s{s1}, s{s1}, 4")
    k.I(f"v_mov_b32 v{vt+4}, s{s1}")
    k.I(f"buffer_store_dwordx4 {v(vt,4)}, v{vt+4}, s[{sdbg}:{sdbg+3}], 0 offen")

def row_stats(k, srd, voff, ntb, tmp, rs, tt, tbstride=16*128, load=True, comp=True):
    if load:
        for tb in range(ntb):
            o = tb * tbstride
            so = "0"
            assert o + 16 < 4096 or True
            if o + 16 < 4096:
                k.I(f"buffer_load_dwordx4 {v(tmp+tb*8,4)}, v{voff}, s[{srd}:{srd+3}], 0 offen offset:{o}")
                k.I(f"buffer_load_dwordx4 {v(tmp+tb*8+4,4)}, v{voff}, s[{srd}:{srd+3}], 0 offen offset:{o+16}")
            else:
                k.I(f"s_movk_i32 s90, {o}")
                k.I(f"buffer_load_dwordx4 {v(tmp+tb*8,4)}, v{voff}, s[{srd}:{srd+3}], s90 offen")
                k.I(f"buffer_load_dwordx4 {v(tmp+tb*8+4,4)}, v{voff}, s[{srd}:{srd+3}], s90 offen offset:16")
    if comp:
        for tb in range(ntb):
            t = tmp + tb * 8
            k.I(f"v_pk_add_f32 {v(t,2)}, {v(t,2)}, {v(t+2,2)}")
            k.I(f"v_pk_add_f32 {v(t+4,2)}, {v(t+4,2)}, {v(t+6,2)}")
        for tb in range(ntb):
            t = tmp + tb * 8
            k.I(f"v_pk_add_f32 {v(t,2)}, {v(t,2)}, {v(t+4,2)}")
        cross_g2(k, [(tmp + tb*8, tmp + tb*8 + 1, tt + tb) for tb in range(ntb)], "v_add_f32")
        k.I("s_mov_b32 s90, 0x3a800000")
        k.I("s_mov_b32 s91, 0x3727c5ac")
        for tb in range(ntb):
            t = tmp + tb * 8
            k.I(f"v_mul_f32 v{rs[tb][1]}, s90, v{t}")
            k.I(f"v_mul_f32 v{t+1}, s90, v{t+1}")
        for tb in range(ntb):
            t = tmp + tb * 8
            k.I(f"v_fma_f32 v{t+1}, -v{rs[tb][1]}, v{rs[tb][1]}, v{t+1}")
        for tb in range(ntb):
            t = tmp + tb * 8
            k.I(f"v_max_f32 v{t+1}, 0, v{t+1}")
        for tb in range(ntb):
            t = tmp + tb * 8
            k.I(f"v_add_f32 v{t+1}, s91, v{t+1}")
        for tb in range(ntb):
            t = tmp + tb * 8
            k.I(f"v_rsq_f32 v{rs[tb][0]}, v{t+1}")
            k.I(f"v_sub_f32 v{rs[tb][1]}, 0, v{rs[tb][1]}")

def a_read_base(k, dst, t1, t2, t3):
    k.I(f"v_and_b32 v{t1}, 15, v0")
    k.I(f"v_lshrrev_b32 v{t2}, 2, v{t1}")
    k.I(f"v_sub_u32 v{t2}, 0, v{t2}"); k.I(f"v_and_b32 v{t2}, 3, v{t2}")
    k.I(f"v_lshrrev_b32 v{t3}, 4, v0")
    k.I(f"v_xor_b32 v{t2}, v{t2}, v{t3}")
    k.I(f"v_lshlrev_b32 v{t2}, 4, v{t2}")
    k.I(f"v_lshl_add_u32 v{dst}, v{t1}, 6, v{t2}")

def a_dma_off(k, dst, t1, t2):
    k.I(f"v_lshrrev_b32 v{t1}, 4, v0")
    k.I(f"v_sub_u32 v{t1}, 0, v{t1}")
    k.I(f"v_xor_b32 v{t1}, v{t1}, v0"); k.I(f"v_and_b32 v{t1}, 3, v{t1}")
    k.I(f"v_lshlrev_b32 v{t1}, 4, v{t1}")
    k.I(f"v_lshrrev_b32 v{t2}, 2, v0"); k.I(f"v_lshl_add_u32 v{dst}, v{t2}, 6, v{t1}")

def w128_dma_off(k, dst, t1, t2, s_row8, ldw, s_tmp):
    k.I(f"v_lshrrev_b32 v{t1}, 3, v0"); k.I(f"v_and_b32 v{t1}, 6, v{t1}")
    k.I(f"v_xor_b32 v{t1}, v{t1}, v0"); k.I(f"v_and_b32 v{t1}, 7, v{t1}"); k.I(f"v_lshlrev_b32 v{t1}, 4, v{t1}")
    k.I(f"v_lshrrev_b32 v{t2}, 3, v0"); k.I(f"v_add_u32 v{t2}, s{s_row8}, v{t2}")
    k.I(f"s_movk_i32 s{s_tmp}, {ldw}"); k.I(f"v_mul_u32_u24 v{t2}, s{s_tmp}, v{t2}")
    k.I(f"v_add_u32 v{dst}, v{t1}, v{t2}")

def w_read_parts(k, rowpart, sw, t1, rowbytes_log2, swz):
    k.I(f"v_lshrrev_b32 v{t1}, 2, v0")
    k.I(f"v_lshlrev_b32 v{rowpart}, {rowbytes_log2}, v{t1}")
    k.I(f"v_and_b32 v{sw}, 3, v0"); k.I(f"v_lshl_add_u32 v{rowpart}, v{sw}, 3, v{rowpart}")
    if swz == 128: k.I(f"v_bfe_u32 v{sw}, v0, 3, 2")
    else: k.I(f"v_bfe_u32 v{sw}, v0, 2, 3")

def gen_prep():
    k = Kernel("prep_kernel")
    done = k.label("done"); lx = k.label("xtask"); lpf = k.label("pf")
    s_w = 20
    k.I("s_cmp_ge_u32 s2, 256"); k.I(f"s_cbranch_scc1 {done}")
    k.I("s_load_dwordx16 s[32:47], s[0:1], 0")
    k.I("s_load_dwordx2 s[48:49], s[0:1], 80")
    stamp_begin(k, 60)
    k.I("v_lshrrev_b32 v1, 6, v0"); k.I("v_and_b32 v0, 63, v0"); k.I(f"v_readfirstlane_b32 s{s_w}, v1")
    k.I("s_cmp_ge_u32 s2, 192"); k.I(f"s_cbranch_scc1 {lpf}")
    k.I("s_cmp_ge_u32 s2, 160"); k.I(f"s_cbranch_scc1 {lx}")
    k.I("s_waitcnt lgkmcnt(0)")
    k.I("s_mov_b32 s4, s34"); k.I("s_mov_b32 s5, s35"); k.I(f"s_mov_b32 s6, {1024*6144}"); k.I("s_mov_b32 s7, 0x00020000")
    k.I("s_movk_i32 s21, 6144"); k.I("s_mov_b32 s22, s2")
    k.I("s_cmp_ge_u32 s2, 48")
    k.I("s_cselect_b32 s4, s42, s4"); k.I("s_cselect_b32 s5, s43, s5"); k.I(f"s_cselect_b32 s6, {1024*7168}, s6")
    k.I("s_cselect_b32 s21, 7168, s21"); k.I("s_cselect_b32 s23, 48, 0")
    k.I("s_cmp_ge_u32 s2, 104")
    k.I("s_cselect_b32 s4, s44, s4"); k.I("s_cselect_b32 s5, s45, s5"); k.I("s_cselect_b32 s23, 104, s23")
    k.I("s_sub_u32 s22, s2, s23"); k.I("s_lshl_b32 s22, s22, 7", "col byte offset")
    k.srd(8, 48, 40960, CS)
    k.I("v_lshrrev_b32 v2, 3, v0"); k.I(f"s_lshl_b32 s24, s{s_w}, 7"); k.I("v_add_u32 v2, s24, v2")
    k.I("v_mul_u32_u24 v2, s21, v2"); k.I("v_and_b32 v3, 7, v0"); k.I("v_lshl_add_u32 v2, v3, 4, v2")
    k.I("s_lshl_b32 s24, s21, 3")
    for i in range(16):
        k.I(f"buffer_load_dwordx4 {v(16+i*4,4)}, v2, s[4:7], s22 offen")
        if i < 15: k.I("s_add_u32 s22, s22, s24")
    for i in range(8): k.I(f"v_mov_b32 v{8+i}, 0")
    k.I("s_mov_b32 s25, 0xffff0000")
    for i in range(16):
        k.I(f"s_waitcnt vmcnt({15-i})")
        for j in range(4):
            r = 16 + i*4 + j
            k.I(f"v_lshlrev_b32 v4, 16, v{r}"); k.I(f"v_and_b32 v5, s25, v{r}")
            k.I(f"v_pk_add_f32 {v(8+2*j,2)}, {v(8+2*j,2)}, v[4:5]")
    k.I("v_lshrrev_b32 v2, 3, v0"); k.I(f"s_lshl_b32 s24, s{s_w}, 3"); k.I("v_add_u32 v2, s24, v2")
    k.I("v_lshlrev_b32 v2, 8, v2"); k.I("v_lshl_add_u32 v2, v3, 5, v2")
    k.I("ds_write_b128 v2, v[8:11]"); k.I("ds_write_b128 v2, v[12:15] offset:16")
    k.I("s_waitcnt lgkmcnt(0)"); k.I("s_barrier")
    k.I(f"s_lshl_b32 s24, s{s_w}, 11"); k.I("v_lshlrev_b32 v2, 2, v0"); k.I("v_add_u32 v3, s24, v2")
    for i in range(8): k.I(f"ds_read_b32 v{8+i}, v3 offset:{i*256}")
    k.I("s_waitcnt lgkmcnt(0)")
    for i in range(1, 8): k.I(f"v_add_f32 v8, v8, v{8+i}")
    k.I(f"s_lshl_b32 s24, s{s_w}, 8"); k.I("v_add_u32 v3, s24, v2")
    k.I("ds_write_b32 v3, v8 offset:16384")
    k.I("s_waitcnt lgkmcnt(0)"); k.I("s_barrier")
    k.I(f"s_cmp_lg_u32 s{s_w}, 0"); k.I(f"s_cbranch_scc1 {done}")
    for i in range(8): k.I(f"ds_read_b32 v{8+i}, v2 offset:{16384+i*256}")
    k.I("s_waitcnt lgkmcnt(0)")
    for i in range(1, 8): k.I(f"v_add_f32 v8, v8, v{8+i}")
    k.I("s_lshl_b32 s24, s2, 8")
    k.I(f"buffer_store_dword v8, v2, s[8:11], s24 offen {WT}")
    stamp_end(k, 60, 62, 64, s_w, 8, 16)
    k.I("s_endpgm")
    k.L(lx)
    k.I("s_waitcnt lgkmcnt(0)")
    k.srd(4, 32, 4*MB); k.srd(8, 48, 4*MB, XB0); k.srd(12, 48, 256*1024, ST0)
    k.I("s_sub_u32 s21, s2, 160"); k.I("s_lshl_b32 s21, s21, 6"); k.I(f"s_and_b32 s22, s{s_w}, 3"); k.I("s_lshl_b32 s22, s22, 4")
    k.I("s_add_u32 s21, s21, s22", "tok0")
    k.I(f"s_lshr_b32 s22, s{s_w}, 2", "col half")
    k.I("v_lshrrev_b32 v2, 2, v0"); k.I("v_add_u32 v2, s21, v2", "token")
    k.I("v_and_b32 v3, 3, v0")
    k.I("v_lshlrev_b32 v4, 11, v2"); k.I("v_lshl_add_u32 v4, v3, 3, v4", "src off")
    k.I("s_lshl_b32 s23, s22, 10")
    for j in range(16):
        k.I(f"buffer_load_dwordx2 {v(16+j*4,2)}, v4, s[4:7], s23 offen offset:{j*64}")
        k.I(f"buffer_load_dwordx2 {v(16+j*4+2,2)}, v4, s[4:7], s23 offen offset:{j*64+32}")
    k.I("v_lshlrev_b32 v5, 6, v2"); k.I("v_lshl_add_u32 v5, v3, 4, v5", "dst off")
    k.I("v_lshlrev_b32 v6, 7, v2", "stat off")
    k.I(f"s_mul_i32 s23, s22, {16*SLAB}")
    k.I("s_lshl_b32 s24, s22, 6")
    k.I("s_mov_b32 s25, 0x3f803f80")
    for t in range(8):
        k.I(f"s_waitcnt vmcnt({min(63, 28 - 4*t + 3*t)})")
        for jj in range(2):
            j = 2*t + jj
            k.I(f"buffer_store_dwordx4 {v(16+j*4,4)}, v5, s[8:11], s23 offen {WT}")
            k.I(f"s_add_u32 s23, s23, {SLAB}")
        a0 = 8 + (t & 1) * 2
        r0 = 16 + t*8
        k.I(f"v_dot2_f32_bf16 v{a0}, v{r0}, s25, 0"); k.I(f"v_dot2_f32_bf16 v{a0+1}, v{r0}, v{r0}, 0")
        for i in range(1, 8):
            k.I(f"v_dot2_f32_bf16 v{a0}, v{r0+i}, s25, v{a0}"); k.I(f"v_dot2_f32_bf16 v{a0+1}, v{r0+i}, v{r0+i}, v{a0+1}")
        k.I("s_nop 2")
        for qp in ("[1,0,3,2]", "[2,3,0,1]"):
            k.I(f"v_add_f32_dpp v{a0}, v{a0}, v{a0} quad_perm:{qp} row_mask:0xf bank_mask:0xf")
            k.I(f"v_add_f32_dpp v{a0+1}, v{a0+1}, v{a0+1} quad_perm:{qp} row_mask:0xf bank_mask:0xf")
        k.I(f"buffer_store_dwordx2 {v(a0,2)}, v6, s[12:15], s24 offen offset:{t*8} {WT}")
    stamp_end(k, 60, 62, 64, s_w, 8, 16)
    k.I("s_endpgm")
    k.L(lpf)
    k.I("s_waitcnt lgkmcnt(0)")
    k.srd(4, 46, 3584*2048); k.srd(8, 38, 2*MB); k.srd(12, 36, 65536)
    k.I("s_sub_u32 s21, s2, 192"); k.I("s_lshl_b32 s22, s21, 3"); k.I(f"s_add_u32 s22, s22, s{s_w}", "global wave 0..511")
    k.I("v_lshlrev_b32 v2, 4, v0")
    k.I("s_lshl_b32 s24, s22, 12")
    for i in range(4): k.I(f"buffer_load_dwordx4 {v(8+i*4,4)}, v2, s[8:11], s24 offen offset:{i*1024}")
    k.I("s_lshl_b32 s24, s22, 10")
    k.I("buffer_load_dwordx4 v[24:27], v2, s[12:15], s24 offen")
    k.I("s_mul_i32 s23, s22, 14336")
    for i in range(14):
        k.I(f"buffer_load_dwordx4 {v(28+i*4,4)}, v2, s[4:7], s23 offen offset:{(i%4)*1024}")
        if i % 4 == 3: k.I("s_add_u32 s23, s23, 4096")
    k.I("s_waitcnt vmcnt(0)")
    stamp_end(k, 60, 62, 64, s_w, 8, 16)
    k.L(done)
    k.vgpr = 96; k.sgpr = 80
    return k, 256, 512, 16384 + 2048

class Loop:
    def __init__(self, k, T, S, SLOT, P):
        self.k, self.T, self.S, self.SLOT, self.P = k, T, S, SLOT, P

def slot_delta(s_slot, s_d, SLOT, S):
    return (f"s_add_u32 s{s_d}, s{s_slot}, {SLOT}\n    s_cmp_eq_u32 s{s_d}, {S*SLOT}\n    s_cselect_b32 s{s_d}, 0, s{s_d}\n"
            f"    s_sub_u32 s{s_d}, s{s_d}, s{s_slot}\n    s_add_u32 s{s_slot}, s{s_slot}, s{s_d}")

def slot_adv(s_slot, SLOT, S):
    return f"s_add_u32 s{s_slot}, s{s_slot}, {SLOT}\n    s_cmp_eq_u32 s{s_slot}, {S*SLOT}\n    s_cselect_b32 s{s_slot}, 0, s{s_slot}"

def loader_loop(k, T, S, P, issue, s_t, extra_tail=None, n_extra=0):
    issue(); issue()
    k.I("s_barrier", "order first loads")
    for u in range(2, S): issue()
    k.I(f"s_waitcnt vmcnt({(S-1)*P})"); k.I("s_barrier")
    k.I(f"s_waitcnt vmcnt({(S-2)*P})"); k.I("s_barrier")
    nissue = T - S
    lp = k.label("lloop")
    k.I(f"s_mov_b32 s{s_t}, 0")
    k.L(lp)
    issue()
    k.I(f"s_waitcnt vmcnt({(S-2)*P})"); k.I("s_barrier")
    k.I(f"s_add_u32 s{s_t}, s{s_t}, 1"); k.I(f"s_cmp_lt_u32 s{s_t}, {nissue}"); k.I(f"s_cbranch_scc1 {lp}")
    if extra_tail: extra_tail()
    for t in range(nissue, T):
        rem = max(T - 1 - (t + 2), 0)
        k.I(f"s_waitcnt vmcnt({min(63, rem*P + n_extra)})"); k.I("s_barrier")

def softmax_pm(k, P, E, M, ntb, s_l2e, outp, outm):
    R = range(ntb)
    for tb in R:
        p = P[tb]; m = M[tb]
        k.I(f"v_max3_f32 v{m}, v{p}, v{p+1}, v{p+2}"); k.I(f"v_max3_f32 v{m+2}, -v{p}, -v{p+1}, -v{p+2}")
    for o in (3, 5):
        for tb in R:
            p = P[tb]; m = M[tb]
            k.I(f"v_max3_f32 v{m}, v{m}, v{p+o}, v{p+o+1}"); k.I(f"v_max3_f32 v{m+2}, v{m+2}, -v{p+o}, -v{p+o+1}")
    for tb in R:
        p = P[tb]; m = M[tb]
        k.I(f"v_max_f32 v{m}, v{m}, v{p+7}"); k.I(f"v_max_f32_e64 v{m+2}, v{m+2}, -v{p+7}")
    cross_g2(k, [(M[tb], M[tb]+2, M[tb]+1) for tb in R], "v_max_f32")
    for tb in R:
        m = M[tb]
        k.I(f"v_mul_f32 v{m}, s{s_l2e}, v{m}"); k.I(f"v_mul_f32 v{m+2}, s{s_l2e}, v{m+2}")
    for tb in R:
        p = P[tb]; e = E[tb]; m = M[tb]
        for j in range(0, 8, 2):
            k.I(f"v_pk_fma_f32 {v(e+j,2)}, {v(p+j,2)}, s[{s_l2e}:{s_l2e+1}], {v(m+2,2)} op_sel_hi:[1,1,0] neg_lo:[1,0,1] neg_hi:[1,0,1]")
        for j in range(0, 8, 2):
            k.I(f"v_pk_fma_f32 {v(p+j,2)}, {v(p+j,2)}, s[{s_l2e}:{s_l2e+1}], {v(m,2)} op_sel_hi:[1,1,0] neg_lo:[0,0,1] neg_hi:[0,0,1]")
    for tb in R:
        for j in range(8): k.I(f"v_exp_f32 v{P[tb]+j}, v{P[tb]+j}")
        for j in range(8): k.I(f"v_exp_f32 v{E[tb]+j}, v{E[tb]+j}")
    for tb in R:
        p = P[tb]; e = E[tb]; m = M[tb]
        k.I(f"v_pk_add_f32 {v(m,2)}, {v(p,2)}, {v(p+2,2)}")
        k.I(f"v_pk_add_f32 {v(m+2,2)}, {v(e,2)}, {v(e+2,2)}")
    for o in (4, 6):
        for tb in R:
            p = P[tb]; e = E[tb]; m = M[tb]
            k.I(f"v_pk_add_f32 {v(m,2)}, {v(m,2)}, {v(p+o,2)}")
            k.I(f"v_pk_add_f32 {v(m+2,2)}, {v(m+2,2)}, {v(e+o,2)}")
    for tb in R:
        m = M[tb]
        k.I(f"v_add_f32 v{m}, v{m}, v{m+1}"); k.I(f"v_add_f32 v{m+2}, v{m+2}, v{m+3}")
    cross_g2(k, [(M[tb], M[tb]+2, M[tb]+1) for tb in R], "v_add_f32")
    for tb in R:
        m = M[tb]
        k.I(f"v_rcp_f32 v{m}, v{m}"); k.I(f"v_rcp_f32 v{m+2}, v{m+2}")
    for tb in R:
        p = P[tb]; e = E[tb]; m = M[tb]
        for j in range(0, 8, 2):
            k.I(f"v_pk_mul_f32 {v(p+j,2)}, {v(p+j,2)}, {v(m,2)} op_sel_hi:[1,0]")
        for j in range(0, 8, 2):
            k.I(f"v_pk_mul_f32 {v(e+j,2)}, {v(e+j,2)}, {v(m+2,2)} op_sel_hi:[1,0]")
    for tb in R:
        p = P[tb]; e = E[tb]
        for j in range(4): k.I(f"v_cvt_pk_bf16_f32 v{outp[tb]+j}, v{p+2*j}, v{p+2*j+1}")
        for j in range(4): k.I(f"v_cvt_pk_bf16_f32 v{outm[tb]+j}, v{e+2*j}, v{e+2*j+1}")

def pk_fma_b1(d, a_, s_):
    return f"v_pk_fma_f32 {v(d,2)}, {v(a_,2)}, {v(s_,2)}, {v(d,2)} op_sel_hi:[1,0,1]"
def pk_mul_b1(d, s_):
    return f"v_pk_mul_f32 {v(d,2)}, {v(d,2)}, {v(s_,2)} op_sel_hi:[1,0]"

def ln_fold_T(k, accs, cs, rs):
    for a4, c4, r2 in accs:
        for j in (0, 2): k.I(pk_fma_b1(a4+j, c4+j, r2[1]))
    for a4, c4, r2 in accs:
        for j in (0, 2): k.I(pk_mul_b1(a4+j, r2[0]))

def wphi_loads(k, dst, hi, srd, voff, soff):
    for fb in range(2):
        for j in range(8):
            off = ((j >> 2) * 16 + (j & 3)) * 64 + fb * 32
            k.I(f"buffer_load_ushort v{(hi if j & 1 else dst)+fb*4+(j>>1)}, v{voff}, s[{srd}:{srd+3}], s{soff} offen offset:{off}")

def wphi_pack(k, dst, hi):
    for i in range(8): k.I(f"v_lshl_or_b32 v{dst+i}, v{hi+i}, 16, v{dst+i}")

def gen_p1(S=7, barpos=20):
    k = Kernel("p1_kernel")
    LDW = 6144; T = 32; ABYTES = 8192; SLOT = ABYTES + 12288; P = 5
    TBL = S * SLOT; LDS = TBL + 1024
    QX = 0; KVX = 32768
    sA, sW, sSt, sCS, sPh, sO1, sO2 = 4, 8, 12, 16, 24, 28, 32
    s_w, s_m, s_n, s_t, s_slot, s_tmp, s_offA, s_offW, s_l, s_u, s_ldsA, s_ldsW, s_lw, s_t2, s_d, s_head = range(40, 56)
    done = k.label("done"); comp = k.label("comp")
    k.I("s_cmp_ge_u32 s2, 256"); k.I(f"s_cbranch_scc1 {done}")
    k.I("s_load_dwordx4 s[64:67], s[0:1], 8")
    k.I("s_load_dwordx2 s[68:69], s[0:1], 80")
    stamp_begin(k, 72)
    k.I("v_lshrrev_b32 v1, 6, v0"); k.I("v_and_b32 v0, 63, v0"); k.I(f"v_readfirstlane_b32 s{s_w}, v1")
    k.I(f"s_and_b32 s{s_tmp}, s2, 7"); k.I(f"s_lshr_b32 s{s_u}, s2, 3")
    k.I(f"s_and_b32 s{s_m}, s{s_tmp}, 1"); k.I(f"s_lshl_b32 s{s_m}, s{s_m}, 3")
    k.I(f"s_and_b32 s{s_l}, s{s_u}, 7"); k.I(f"s_add_u32 s{s_m}, s{s_m}, s{s_l}")
    k.I(f"s_lshr_b32 s{s_n}, s{s_tmp}, 1"); k.I(f"s_lshl_b32 s{s_n}, s{s_n}, 2")
    k.I(f"s_lshr_b32 s{s_l}, s{s_u}, 3"); k.I(f"s_add_u32 s{s_n}, s{s_n}, s{s_l}")
    k.I(f"s_and_b32 s{s_lw}, s{s_w}, 3")
    k.I(f"s_lshr_b32 s{s_head}, s{s_lw}, 1"); k.I(f"s_lshl_b32 s{s_tmp}, s{s_n}, 1"); k.I(f"s_add_u32 s{s_head}, s{s_head}, s{s_tmp}")
    k.I(f"s_cmp_lt_u32 s{s_w}, 4"); k.I(f"s_cbranch_scc1 {comp}")
    vo = [2, 3, 4, 5]; t1, t2, t3 = 6, 7, 8
    a_dma_off(k, vo[0], t1, t2)
    k.I(f"s_lshl_b32 s{s_ldsA}, s{s_lw}, 11"); k.I(f"v_add_u32 v{vo[0]}, s{s_ldsA}, v{vo[0]}")
    k.I(f"s_lshl_b32 s{s_t2}, s{s_lw}, 3")
    w128_dma_off(k, vo[1], t1, t2, s_t2, LDW, s_tmp)
    k.I(f"v_add_u32 v{vo[2]}, 2048, v{vo[1]}"); k.I(f"v_add_u32 v{vo[3]}, 4096, v{vo[1]}")
    k.I(f"s_lshl_b32 s{s_ldsW}, s{s_lw}, 10"); k.I(f"s_add_u32 s{s_ldsW}, s{s_ldsW}, {ABYTES}")
    k.I(f"s_lshl_b32 s{s_offA}, s{s_m}, 13"); k.I(f"s_lshl_b32 s{s_offW}, s{s_n}, 7")
    k.I(f"s_mov_b32 s{s_slot}, 0")
    k.I("s_waitcnt lgkmcnt(0)")
    k.srd(sA, 68, 4*MB, XB0); k.srd(sW, 64, 1024*LDW)
    def issue():
        k.I(f"s_add_u32 m0, s{s_slot}, s{s_ldsA}"); k.I(f"s_add_u32 s{s_t2}, s{s_slot}, s{s_ldsW}")
        k.I(f"buffer_load_dwordx4 v{vo[0]}, s[{sA}:{sA+3}], s{s_offA} offen lds")
        k.I(f"buffer_load_dwordx4 v{vo[0]}, s[{sA}:{sA+3}], s{s_offA} offen offset:1024 lds")
        for seg in range(3):
            k.I(f"s_add_u32 m0, s{s_t2}, {seg*4096}")
            if seg == 0: k.I(f"s_add_u32 s{s_offA}, s{s_offA}, {SLAB}")
            k.I(f"buffer_load_dwordx4 v{vo[1+seg]}, s[{sW}:{sW+3}], s{s_offW} offen lds")
        k.I(f"s_add_u32 s{s_offW}, s{s_offW}, {32*LDW}")
        k.I(slot_adv(s_slot, SLOT, S))
    hq = 16
    hcs = 48
    hw = 56
    hrs = [(176 + 4*tb, 178 + 4*tb) for tb in range(4)]
    hqf = 72
    hP = [88 + 8*tb for tb in range(4)]; hE = [120 + 8*tb for tb in range(4)]; hM = [152 + 4*tb for tb in range(4)]
    def extra():
        k.srd(sCS, 68, 40960, CS); k.srd(sPh, 66, 65536); k.srd(sO1, 68, 8*MB, PHIQ)
        k.I(f"v_lshrrev_b32 v{t1}, 4, v0"); k.I(f"v_lshlrev_b32 v{t2}, 4, v{t1}")
        k.I(f"s_lshl_b32 s{s_tmp}, s{s_head}, 7")
        k.I(f"buffer_load_dwordx4 {v(hcs,4)}, v{t2}, s[{sCS}:{sCS+3}], s{s_tmp} offen")
        k.I(f"buffer_load_dwordx4 {v(hcs+4,4)}, v{t2}, s[{sCS}:{sCS+3}], s{s_tmp} offen offset:64")
        k.I(f"v_and_b32 v{t2}, 15, v0"); k.I(f"v_lshlrev_b32 v{t2}, 1, v{t2}"); k.I(f"v_lshl_add_u32 v{t3}, v{t1}, 8, v{t2}")
        k.I(f"s_lshl_b32 s{s_tmp}, s{s_head}, 11")
        wphi_loads(k, hw, 168, sPh, t3, s_tmp)
    loader_loop(k, T, S, P, issue, s_t, extra, 18)
    k.I("s_barrier", "E1")
    k.I("s_barrier", "E2")
    k.I(f"s_lshl_b32 s{s_tmp}, s{s_lw}, 13"); k.I(f"v_lshlrev_b32 v{t1}, 4, v0"); k.I(f"v_add_u32 v{t2}, s{s_tmp}, v{t1}")
    for i in range(8): k.I(f"ds_read_b128 {v(hq+i*4,4)}, v{t2} offset:{QX+i*1024}")
    k.I(f"s_and_b32 s{s_tmp}, s{s_lw}, 1"); k.I(f"s_lshl_b32 s{s_tmp}, s{s_tmp}, 8"); k.I(f"s_add_u32 s{s_tmp}, s{s_tmp}, {TBL}")
    k.I(f"v_and_b32 v{t3}, 15, v0"); k.I(f"v_lshlrev_b32 v{t3}, 2, v{t3}"); k.I(f"v_add_u32 v{t3}, s{s_tmp}, v{t3}")
    for tb in range(4):
        k.I(f"ds_read_b32 v{hrs[tb][0]}, v{t3} offset:{tb*64}"); k.I(f"ds_read_b32 v{hrs[tb][1]}, v{t3} offset:{tb*64+512}")
    k.I(f"s_mov_b32 s76, {LOG2E}"); k.I(f"s_mov_b32 s77, {LOG2E}")
    k.I("s_waitcnt vmcnt(0) lgkmcnt(0)")
    wphi_pack(k, hw, 168)
    ln_fold_T(k, [(hq + (b*4+tb)*4, hcs + b*4, hrs[tb]) for b in range(2) for tb in range(4)], None, None)
    for tb in range(4):
        for b in range(2):
            for j in range(2):
                a4 = hq + (b*4+tb)*4
                k.I(f"v_cvt_pk_bf16_f32 v{hqf+tb*4+b*2+j}, v{a4+2*j}, v{a4+2*j+1}")
    for tb in range(4):
        for fb in range(2): k.I(mfma(hP[tb] + fb*4, hw + fb*4, hqf + tb*4))
    softmax_pm(k, hP, hE, hM, 4, 76, hP, hE)
    k.I(f"s_lshl_b32 s{s_tmp}, s{s_head}, 7"); k.I(f"s_lshl_b32 s{s_l}, s{s_m}, 3"); k.I(f"s_add_u32 s{s_tmp}, s{s_tmp}, s{s_l}")
    k.I(f"s_and_b32 s{s_l}, s{s_lw}, 1"); k.I(f"s_lshl_b32 s{s_l}, s{s_l}, 2"); k.I(f"s_add_u32 s{s_tmp}, s{s_tmp}, s{s_l}")
    k.I(f"s_lshl_b32 s{s_tmp}, s{s_tmp}, 11")
    for tb in range(4):
        if tb == 2: k.I(f"s_add_u32 s{s_tmp}, s{s_tmp}, 4096")
        k.I(f"buffer_store_dwordx4 {v(hP[tb],4)}, v{t1}, s[{sO1}:{sO1+3}], s{s_tmp} offen offset:{(tb&1)*2048} {WT}")
        k.I(f"buffer_store_dwordx4 {v(hE[tb],4)}, v{t1}, s[{sO1}:{sO1+3}], s{s_tmp} offen offset:{(tb&1)*2048+1024} {WT}")
    stamp_end(k, 72, 74, 80, s_w, 8, 16)
    k.I("s_endpgm")

    k.L(comp)
    V = Alloc(1, 256, "v")
    pool = V.get(20, 2)
    ev = [pool + 2*i for i in range(10)]; od = [pool + 2*i + 1 for i in range(10)]
    t1, t2, t3, t4, vAc = od[0:5]; vWc = od[5:7]
    rs = [(ev[2*tb], ev[2*tb+1]) for tb in range(4)]
    csv = ev[8:10]
    csk = V.get(8, 4); wph = V.get(8, 4)
    acc = V.get(96, 4)
    fr = [V.get(40, 4), V.get(40, 4)]
    xt = V.get(24, 4)
    k.I("s_waitcnt lgkmcnt(0)")
    k.srd(sSt, 68, 256*1024, ST0); k.srd(sCS, 68, 40960, CS); k.srd(sPh, 66, 65536)
    k.srd(sO1, 68, 4*MB, KVP); k.srd(sO2, 68, 128*1024, ZP)
    k.I(f"s_lshl_b32 s{s_tmp}, s{s_m}, 7"); k.I(f"s_and_b32 s{s_l}, s{s_w}, 1"); k.I(f"s_lshl_b32 s{s_l}, s{s_l}, 6"); k.I(f"s_add_u32 s{s_tmp}, s{s_tmp}, s{s_l}", "tok0")
    k.I(f"v_and_b32 v{t1}, 15, v0"); k.I(f"v_add_u32 v{t2}, s{s_tmp}, v{t1}"); k.I(f"v_lshlrev_b32 v{t2}, 7, v{t2}")
    k.I(f"v_lshrrev_b32 v{t3}, 4, v0"); k.I(f"v_lshl_add_u32 v{t2}, v{t3}, 5, v{t2}")
    row_stats(k, sSt, t2, 4, fr[1], rs, xt, comp=False)
    k.I("s_barrier", "PA")
    k.I(f"v_lshlrev_b32 v{t2}, 4, v{t3}"); k.I(f"s_lshl_b32 s{s_tmp}, s{s_head}, 7"); k.I(f"s_add_u32 s{s_tmp}, s{s_tmp}, 4096")
    k.I(f"buffer_load_dwordx4 {v(csk,4)}, v{t2}, s[{sCS}:{sCS+3}], s{s_tmp} offen")
    k.I(f"buffer_load_dwordx4 {v(csk+4,4)}, v{t2}, s[{sCS}:{sCS+3}], s{s_tmp} offen offset:64")
    k.I(f"v_lshlrev_b32 v{t2}, 2, v{t1}"); k.I(f"s_add_u32 s{s_tmp}, s{s_tmp}, 4096")
    k.I(f"buffer_load_dword v{csv[0]}, v{t2}, s[{sCS}:{sCS+3}], s{s_tmp} offen")
    k.I(f"buffer_load_dword v{csv[1]}, v{t2}, s[{sCS}:{sCS+3}], s{s_tmp} offen offset:64")
    k.I(f"v_lshlrev_b32 v{t2}, 1, v{t1}"); k.I(f"v_lshl_add_u32 v{t2}, v{t3}, 8, v{t2}")
    k.I(f"s_lshl_b32 s{s_tmp}, s{s_head}, 11")
    wphi_loads(k, wph, xt + 8, sPh, t2, s_tmp)
    a_read_base(k, vAc, t1, t2, t3)
    k.I(f"s_and_b32 s{s_tmp}, s{s_w}, 1"); k.I(f"s_lshl_b32 s{s_tmp}, s{s_tmp}, 12"); k.I(f"v_add_u32 v{vAc}, s{s_tmp}, v{vAc}")
    w_read_parts(k, t3, t4, t1, 7, 128)
    k.I(f"s_and_b32 s{s_l}, s{s_w}, 2")
    for up in range(2):
        k.I(f"s_add_u32 s{s_t2}, s{s_l}, {up}")
        k.I(f"v_xor_b32 v{t2}, s{s_t2}, v{t4}")
        k.I(f"v_lshl_add_u32 v{vWc[up]}, v{t2}, 5, v{t3}")
        k.I(f"v_add_u32 v{vWc[up]}, {ABYTES}, v{vWc[up]}")
    for i in range(96): k.I(f"v_mov_b32 v{acc+i}, 0")
    k.I("s_waitcnt vmcnt(20)")
    row_stats(k, sSt, None, 4, fr[1], rs, xt, load=False)
    k.I(f"s_and_b32 s{s_tmp}, s{s_w}, 1"); k.I(f"s_lshl_b32 s{s_tmp}, s{s_tmp}, 8"); k.I(f"s_add_u32 s{s_tmp}, s{s_tmp}, {TBL}")
    k.I(f"v_and_b32 v{t1}, 15, v0"); k.I(f"v_lshlrev_b32 v{t1}, 2, v{t1}"); k.I(f"v_add_u32 v{t1}, s{s_tmp}, v{t1}")
    for tb in range(4): k.I(f"ds_write2_b32 v{t1}, v{rs[tb][0]}, v{rs[tb][1]} offset0:{tb*16} offset1:{tb*16+128}")

    def reads(st):
        r = []; f = fr[st]
        def rw(nb):
            seg, up = nb // 2, nb % 2; d = f + (4 + nb) * 4
            return [f"ds_read_b64_tr_b16 {v(d,2)}, v{vWc[up]} offset:{seg*4096}",
                    f"ds_read_b64_tr_b16 {v(d+2,2)}, v{vWc[up]} offset:{seg*4096+2048}"]
        r += rw(0)
        for tb in range(4): r.append(f"ds_read_b128 {v(f+tb*4,4)}, v{vAc} offset:{tb*1024}")
        for nb in range(1, 6): r += rw(nb)
        return r
    def mf(st):
        f = fr[st]; r = []
        for nb in range(6):
            for tb in range(4):
                c = acc + (nb*4+tb)*4; wf = f + (4+nb)*4; xf = f + tb*4
                r.append(mfma(c, wf, xf, c) if nb < 4 else mfma(c, xf, wf, c))
        return r
    upd = [slot_delta(s_slot, s_d, SLOT, S), f"v_add_u32 v{vAc}, s{s_d}, v{vAc}", f"v_add_u32 v{vWc[0]}, s{s_d}, v{vWc[0]}", f"v_add_u32 v{vWc[1]}, s{s_d}, v{vWc[1]}"]
    k.I(f"s_mov_b32 s{s_slot}, 0"); k.I(f"s_mov_b32 s{s_t}, 0")
    k.I("s_barrier", "P0")
    emit(k, reads(0)); emit(k, upd)
    k.I("s_waitcnt lgkmcnt(0)"); k.I("s_barrier", "barrier(-1)")
    loop = k.label("loop"); k.L(loop)
    for st in range(2):
        items = [(i, x) for i, x in enumerate(reads(1 - st))]
        items += [(16 + i, x) for i, x in enumerate(upd)]
        items += [(barpos, "s_waitcnt lgkmcnt(0)"), (barpos, "s_barrier")]
        emit(k, place(mf(st), items))
    k.I(f"s_add_u32 s{s_t}, s{s_t}, 2"); k.I(f"s_cmp_lt_u32 s{s_t}, {T}"); k.I(f"s_cbranch_scc1 {loop}")
    k.I("s_barrier", "E1")
    k.I(f"s_lshl_b32 s{s_tmp}, s{s_w}, 13"); k.I(f"v_lshlrev_b32 v{t1}, 4, v0"); k.I(f"v_add_u32 v{t2}, s{s_tmp}, v{t1}")
    k.I("s_nop 7")
    for i in range(8): k.I(f"ds_write_b128 v{t2}, {v(acc+i*4,4)} offset:{QX+i*1024}")
    F = fr[0]
    vst = F
    k.I(f"s_and_b32 s{s_tmp}, s{s_w}, 1"); k.I(f"s_lshl_b32 s{s_tmp}, s{s_tmp}, 8"); k.I(f"s_add_u32 s{s_tmp}, s{s_tmp}, {TBL}")
    k.I(f"v_lshrrev_b32 v{t3}, 4, v0"); k.I(f"v_lshlrev_b32 v{t3}, 4, v{t3}"); k.I(f"v_add_u32 v{t3}, s{s_tmp}, v{t3}")
    for tb in range(4):
        k.I(f"ds_read_b128 {v(vst+tb*8,4)}, v{t3} offset:{tb*64}")
        k.I(f"ds_read_b128 {v(vst+tb*8+4,4)}, v{t3} offset:{tb*64+512}")
    k.I(f"s_mov_b32 s76, {LOG2E}"); k.I(f"s_mov_b32 s77, {LOG2E}")
    k.I("s_waitcnt vmcnt(0)")
    wphi_pack(k, wph, xt + 8)
    ak = acc + 32; av = acc + 64
    ln_fold_T(k, [(ak + (b*4+tb)*4, csk + b*4, rs[tb]) for b in range(2) for tb in range(4)], None, None)
    k.I("s_waitcnt lgkmcnt(0)"); k.I("s_barrier", "E2")
    kf = F + 32
    for tb in range(4):
        for b in range(2):
            for j in range(2):
                a4 = ak + (b*4+tb)*4
                k.I(f"v_cvt_pk_bf16_f32 v{kf+tb*4+b*2+j}, v{a4+2*j}, v{a4+2*j+1}")
    Pq = [acc + 8*tb for tb in range(4)]
    for tb in range(4):
        for fb in range(2): k.I(mfma(Pq[tb] + fb*4, wph + fb*4, kf + tb*4))
    for d in range(2):
        for tb in range(4):
            a4 = av + (d*4+tb)*4
            for j in (0, 2):
                k.I(pk_fma_b1(a4+j, vst+tb*8+4+j, csv[d]))
    for d in range(2):
        for tb in range(4):
            a4 = av + (d*4+tb)*4
            for j in (0, 2):
                k.I(f"v_pk_mul_f32 {v(a4+j,2)}, {v(a4+j,2)}, {v(vst+tb*8+j,2)}")
    vf = F + 48
    for d in range(2):
        for tb in range(4):
            a4 = av + (d*4+tb)*4
            for j in range(2):
                k.I(f"v_cvt_pk_bf16_f32 v{vf+(d*2+(tb>>1))*4+(tb&1)*2+j}, v{a4+2*j}, v{a4+2*j+1}")
    Eq = [ak + 8*tb for tb in range(4)]
    Mq = [F + 4*tb for tb in range(4)]
    softmax_pm(k, Pq, Eq, Mq, 4, 76, Pq, Eq)
    sel = F + 16
    ones = F + 24
    k.I(f"v_and_b32 v{t2}, 15, v0"); k.I(f"v_lshrrev_b32 v{t3}, 4, v0"); k.I(f"v_lshlrev_b32 v{t3}, 2, v{t3}")
    k.I(f"v_sub_u32 v{t2}, v{t2}, v{t3}", "j = (l&15) - 4g ; valid 0..3")
    k.I("s_mov_b32 s78, 0x3f80"); k.I("s_mov_b32 s79, 0x3f800000")
    for half in range(2):
        k.I(f"v_mov_b32 v{sel+half}, 0")
        k.I(f"v_cmp_eq_u32 vcc, {2*half}, v{t2}"); k.I(f"v_mov_b32 v{t3}, s78"); k.I(f"v_cndmask_b32 v{sel+half}, v{sel+half}, v{t3}, vcc")
        k.I(f"v_cmp_eq_u32 vcc, {2*half+1}, v{t2}"); k.I(f"v_mov_b32 v{t3}, s79"); k.I(f"v_cndmask_b32 v{sel+half}, v{sel+half}, v{t3}, vcc")
    k.I(f"v_mov_b32 v{sel+2}, 0"); k.I(f"v_mov_b32 v{sel+3}, 0"); k.I(f"v_mov_b32 v{sel+4}, 0"); k.I(f"v_mov_b32 v{sel+5}, 0")
    k.I(f"v_mov_b32 v{sel+6}, v{sel}"); k.I(f"v_mov_b32 v{sel+7}, v{sel+1}")
    k.I("s_mov_b32 s78, 0x3f803f80")
    for j in range(4): k.I(f"v_mov_b32 v{ones+j}, s78")
    Tt = av
    TF = F + 64
    KV = []
    KV0 = xt
    KV1 = None
    for sg in range(2):
        ph = Pq if sg == 0 else Eq
        for fb in range(2):
            for tb in range(4): k.I(mfma(Tt + (fb*4+tb)*4, ph[tb], sel + fb*4))
        for fb in range(2):
            for tb in range(4):
                a4 = Tt + (fb*4+tb)*4
                for j in range(2):
                    k.I(f"v_cvt_pk_bf16_f32 v{TF+(fb*2+(tb>>1))*4+(tb&1)*2+j}, v{a4+2*j}, v{a4+2*j+1}")
        base = KV0 if sg == 0 else acc
        for pair in range(2):
            for fb in range(2):
                for d in range(3):
                    c = base + (fb*3+d)*4
                    b_ = vf + (d*2+pair)*4 if d < 2 else ones
                    k.I(mfma(c, TF + (fb*2+pair)*4, b_, c if pair else None))
    keep1 = k.label("keep1"); join = k.label("join")
    k.I(f"s_mul_i32 s{s_tmp}, s{s_w}, 6144"); k.I(f"v_add_u32 v{t2}, s{s_tmp}, v{t1}")
    k.I(f"s_xor_b32 s{s_l}, s{s_w}, 1"); k.I(f"s_mul_i32 s{s_l}, s{s_l}, 6144"); k.I(f"v_add_u32 v{t3}, s{s_l}, v{t1}")
    k.I("s_nop 7")
    k.I(f"s_bitcmp1_b32 s{s_w}, 0"); k.I(f"s_cbranch_scc1 {keep1}")
    for i in range(6): k.I(f"ds_write_b128 v{t2}, {v(acc+i*4,4)} offset:{KVX+i*1024}")
    k.I(f"s_branch {join}")
    k.L(keep1)
    for i in range(6): k.I(f"ds_write_b128 v{t2}, {v(KV0+i*4,4)} offset:{KVX+i*1024}")
    k.I("s_waitcnt lgkmcnt(0)")
    for i in range(24): k.I(f"v_mov_b32 v{KV0+i}, v{acc+i}")
    k.L(join)
    k.I("s_waitcnt lgkmcnt(0)"); k.I("s_barrier", "E3")
    for i in range(6): k.I(f"ds_read_b128 {v(av+i*4,4)}, v{t3} offset:{KVX+i*1024}")
    k.I(f"s_lshl_b32 s{s_tmp}, s{s_head}, 4"); k.I(f"s_add_u32 s{s_tmp}, s{s_tmp}, s{s_m}")
    k.I(f"s_and_b32 s{s_l}, s{s_w}, 1")
    k.I(f"s_lshl_b32 s{s_u}, s{s_tmp}, 13"); k.I(f"s_lshl_b32 s{s_t2}, s{s_l}, 12"); k.I(f"s_add_u32 s{s_u}, s{s_u}, s{s_t2}")
    k.I(f"s_lshl_b32 s{s_tmp}, s{s_tmp}, 8"); k.I(f"s_lshl_b32 s{s_t2}, s{s_l}, 7"); k.I(f"s_add_u32 s{s_tmp}, s{s_tmp}, s{s_t2}")
    k.I(f"v_lshrrev_b32 v{t2}, 4, v0"); k.I(f"v_lshlrev_b32 v{t2}, 4, v{t2}")
    k.I("s_waitcnt lgkmcnt(0)")
    for i in range(0, 24, 2): k.I(f"v_pk_add_f32 {v(KV0+i,2)}, {v(KV0+i,2)}, {v(av+i,2)}")
    for fb in range(2):
        for d in range(2):
            k.I(f"buffer_store_dwordx4 {v(KV0+(fb*3+d)*4,4)}, v{t1}, s[{sO1}:{sO1+3}], s{s_u} offen offset:{(fb*2+d)*1024} {WT}")
    k.I(f"v_and_b32 v{t3}, 15, v0"); k.I(f"v_cmp_eq_u32 vcc, 0, v{t3}"); k.I("s_and_saveexec_b64 s[78:79], vcc")
    for fb in range(2):
        k.I(f"buffer_store_dwordx4 {v(KV0+(fb*3+2)*4,4)}, v{t2}, s[{sO2}:{sO2+3}], s{s_tmp} offen offset:{fb*64} {WT}")
    k.I("s_mov_b64 exec, s[78:79]")
    stamp_end(k, 72, 74, 80, s_w, 8, 16)
    k.L(done)
    k.vgpr = V.hi; k.sgpr = 96
    return k, 256, 512, LDS

def gen_p15():
    k = Kernel("p15_kernel")
    sK, sZ, sP, sO = 4, 8, 12, 16
    s_w, s_h, s_c, s_tmp, s_l = 20, 21, 22, 23, 24
    done = k.label("done")
    k.I("s_cmp_ge_u32 s2, 256"); k.I(f"s_cbranch_scc1 {done}")
    k.I("s_load_dwordx2 s[30:31], s[0:1], 80")
    stamp_begin(k, 40)
    k.I("v_lshrrev_b32 v1, 6, v0"); k.I("v_and_b32 v0, 63, v0"); k.I(f"v_readfirstlane_b32 s{s_w}, v1")
    k.I(f"s_and_b32 s{s_h}, s2, 31"); k.I(f"s_lshr_b32 s{s_c}, s2, 5")
    k.I("v_lshlrev_b32 v1, 4, v0"); k.I("v_lshrrev_b32 v2, 4, v0"); k.I("v_lshlrev_b32 v2, 4, v2")
    k.I(f"s_lshl_b32 s{s_tmp}, s{s_h}, 17"); k.I(f"s_lshl_b32 s{s_l}, s{s_w}, 11"); k.I(f"s_add_u32 s{s_tmp}, s{s_tmp}, s{s_l}")
    k.I("s_waitcnt lgkmcnt(0)")
    k.srd(sK, 30, 4*MB, KVP); k.srd(sZ, 30, 128*1024, ZP); k.srd(sP, 30, 8*MB, PHIQ); k.srd(sO, 30, 4*MB, OB)
    R = 8; PH = 200
    for mt in range(16):
        k.I(f"buffer_load_dwordx4 {v(R+mt*12,4)}, v1, s[{sK}:{sK+3}], s{s_tmp} offen")
        k.I(f"buffer_load_dwordx4 {v(R+mt*12+4,4)}, v1, s[{sK}:{sK+3}], s{s_tmp} offen offset:1024")
        if mt < 15: k.I(f"s_add_u32 s{s_tmp}, s{s_tmp}, 8192")
    k.I(f"s_lshl_b32 s{s_tmp}, s{s_h}, 12"); k.I(f"s_lshl_b32 s{s_l}, s{s_w}, 6"); k.I(f"s_add_u32 s{s_tmp}, s{s_tmp}, s{s_l}")
    for mt in range(16):
        k.I(f"buffer_load_dwordx4 {v(R+mt*12+8,4)}, v2, s[{sZ}:{sZ+3}], s{s_tmp} offen offset:{mt*256}")
    k.I(f"s_lshl_b32 s{s_tmp}, s{s_h}, 7"); k.I(f"s_lshl_b32 s{s_l}, s{s_c}, 4"); k.I(f"s_add_u32 s{s_tmp}, s{s_tmp}, s{s_l}")
    k.I(f"s_lshl_b32 s{s_l}, s{s_w}, 2"); k.I(f"s_add_u32 s{s_tmp}, s{s_tmp}, s{s_l}"); k.I(f"s_lshl_b32 s{s_tmp}, s{s_tmp}, 11")
    for i in range(8):
        if i == 4: k.I(f"s_add_u32 s{s_tmp}, s{s_tmp}, 4096")
        k.I(f"buffer_load_dwordx4 {v(PH+i*4,4)}, v1, s[{sP}:{sP+3}], s{s_tmp} offen offset:{(i&3)*1024}")
    for mt in range(1, 16):
        k.I(f"s_waitcnt vmcnt({24 + 2*(15-mt)})")
        for j in range(0, 8, 2): k.I(f"v_pk_add_f32 {v(R+j,2)}, {v(R+j,2)}, {v(R+mt*12+j,2)}")
    for mt in range(1, 16):
        k.I(f"s_waitcnt vmcnt({8 + (15-mt)})")
        for j in (8, 10): k.I(f"v_pk_add_f32 {v(R+j,2)}, {v(R+j,2)}, {v(R+mt*12+j,2)}")
    for d in range(3):
        for j in range(2): k.I(f"v_cvt_pk_bf16_f32 v{R+16+d*2+j}, v{R+d*4+2*j}, v{R+d*4+2*j+1}")
    k.I(f"s_lshr_b32 s{s_tmp}, s{s_w}, 1"); k.I(f"s_mul_i32 s{s_tmp}, s{s_tmp}, 3072"); k.I(f"s_and_b32 s{s_l}, s{s_w}, 1"); k.I(f"s_lshl_b32 s{s_l}, s{s_l}, 3")
    k.I(f"s_add_u32 s{s_tmp}, s{s_tmp}, s{s_l}"); k.I(f"v_add_u32 v3, s{s_tmp}, v1")
    for d in range(3): k.I(f"ds_write_b64 v3, {v(R+16+d*2,2)} offset:{d*1024}")
    k.I("s_waitcnt lgkmcnt(0)"); k.I("s_barrier")
    KF = 32
    for i in range(6): k.I(f"ds_read_b128 {v(KF+i*4,4)}, v1 offset:{i*1024}")
    k.I("v_and_b32 v3, 15, v0"); k.I("v_lshl_add_u32 v3, v3, 6, v2")
    k.I(f"s_lshl_b32 s{s_tmp}, s{s_h}, 17"); k.I(f"s_lshl_b32 s{s_l}, s{s_c}, 14"); k.I(f"s_add_u32 s{s_tmp}, s{s_tmp}, s{s_l}")
    k.I(f"s_lshl_b32 s{s_l}, s{s_w}, 12"); k.I(f"s_add_u32 s{s_tmp}, s{s_tmp}, s{s_l}")
    k.I("s_mov_b32 s26, 0x358637bd")
    k.I("s_waitcnt vmcnt(0) lgkmcnt(0)")
    N = 64
    for sg in range(2):
        for tb in range(4):
            for d in range(3):
                c = N + (tb*3+d)*4
                k.I(mfma(c, KF + (sg*3+d)*4, PH + (tb*2+sg)*4, c if sg else None))
    for tb in range(4): k.I(f"v_add_f32 v{N+(tb*3+2)*4}, s26, v{N+(tb*3+2)*4}")
    for tb in range(4): k.I(f"v_rcp_f32 v{N+(tb*3+2)*4}, v{N+(tb*3+2)*4}")
    for tb in range(4):
        for j in range(0, 8, 2):
            c = N + tb*12
            k.I(f"v_pk_mul_f32 {v(c+j,2)}, {v(c+j,2)}, {v(c+8,2)} op_sel_hi:[1,0]")
    for tb in range(4):
        c = N + tb*12
        for j in range(4): k.I(f"v_cvt_pk_bf16_f32 v{120+tb*4+j}, v{c+2*j}, v{c+2*j+1}")
        k.I(f"buffer_store_dwordx4 {v(120+tb*4,4)}, v3, s[{sO}:{sO+3}], s{s_tmp} offen offset:{tb*1024} {WT}")
    stamp_end(k, 40, 42, 44, s_w, 4, 16)
    k.L(done)
    k.vgpr = 232; k.sgpr = 64
    return k, 256, 256, 6144

def gen_pd(name, warg, K, Aoff, Abytes, RES, OUT, STO, final=False, S=6, KS=2, barpos=None):
    k = Kernel(name)
    LDW = 2048; T = K // 32 // KS; SUB = 8192 + 4096; SLOT = SUB * KS; P = 3 * KS
    LDS = S * SLOT
    sA, sW, sR, sO, sSt = 4, 8, 12, 16, 24
    s_w, s_m, s_n, s_t, s_slot, s_tmp, s_offA, s_offW, s_l, s_u, s_ldsA, s_ldsW, s_lw, s_t2, s_d = range(40, 55)
    done = k.label("done"); comp = k.label("comp")
    k.I("s_cmp_ge_u32 s2, 256"); k.I(f"s_cbranch_scc1 {done}")
    k.I(f"s_load_dwordx2 s[64:65], s[0:1], {ARG[warg]}")
    k.I("s_load_dwordx2 s[68:69], s[0:1], 80")
    if final: k.I("s_load_dwordx2 s[66:67], s[0:1], 64")
    stamp_begin(k, 72)
    k.I("v_lshrrev_b32 v1, 6, v0"); k.I("v_and_b32 v0, 63, v0"); k.I(f"v_readfirstlane_b32 s{s_w}, v1")
    k.I(f"s_and_b32 s{s_tmp}, s2, 7"); k.I(f"s_lshr_b32 s{s_u}, s2, 3")
    k.I(f"s_and_b32 s{s_m}, s{s_tmp}, 3"); k.I(f"s_lshl_b32 s{s_m}, s{s_m}, 2")
    k.I(f"s_and_b32 s{s_l}, s{s_u}, 3"); k.I(f"s_add_u32 s{s_m}, s{s_m}, s{s_l}")
    k.I(f"s_lshr_b32 s{s_n}, s{s_tmp}, 2"); k.I(f"s_lshl_b32 s{s_n}, s{s_n}, 3")
    k.I(f"s_lshr_b32 s{s_l}, s{s_u}, 2"); k.I(f"s_add_u32 s{s_n}, s{s_n}, s{s_l}")
    k.I(f"s_and_b32 s{s_lw}, s{s_w}, 3")
    k.I(f"s_cmp_lt_u32 s{s_w}, 4"); k.I(f"s_cbranch_scc1 {comp}")
    vo = [2, 3]; t1, t2 = 6, 7
    a_dma_off(k, vo[0], t1, t2)
    k.I(f"s_lshl_b32 s{s_ldsA}, s{s_lw}, 11"); k.I(f"v_add_u32 v{vo[0]}, s{s_ldsA}, v{vo[0]}")
    k.I(f"s_lshl_b32 s{s_t2}, s{s_lw}, 3")
    w128_dma_off(k, vo[1], t1, t2, s_t2, LDW, s_tmp)
    k.I(f"s_lshl_b32 s{s_ldsW}, s{s_lw}, 10"); k.I(f"s_add_u32 s{s_ldsW}, s{s_ldsW}, 8192")
    k.I(f"s_lshl_b32 s{s_offA}, s{s_m}, 13"); k.I(f"s_lshl_b32 s{s_offW}, s{s_n}, 7")
    k.I(f"s_mov_b32 s{s_slot}, 0")
    k.I("s_waitcnt lgkmcnt(0)")
    k.srd(sA, 68, Abytes, Aoff); k.srd(sW, 64, K*LDW)
    def issue():
        k.I(f"s_add_u32 s{s_t2}, s{s_slot}, s{s_ldsA}"); k.I(f"s_add_u32 s{s_u}, s{s_slot}, s{s_ldsW}")
        for sub in range(KS):
            k.I(f"s_add_u32 m0, s{s_t2}, {sub*SUB}")
            k.I(f"buffer_load_dwordx4 v{vo[0]}, s[{sA}:{sA+3}], s{s_offA} offen lds")
            k.I(f"buffer_load_dwordx4 v{vo[0]}, s[{sA}:{sA+3}], s{s_offA} offen offset:1024 lds")
            k.I(f"s_add_u32 m0, s{s_u}, {sub*SUB}")
            k.I(f"s_add_u32 s{s_offA}, s{s_offA}, {SLAB}")
            k.I(f"buffer_load_dwordx4 v{vo[1]}, s[{sW}:{sW+3}], s{s_offW} offen lds")
            k.I(f"s_add_u32 s{s_offW}, s{s_offW}, {32*LDW}")
        k.I(slot_adv(s_slot, SLOT, S))
    if KS == 1:
        loader_loop(k, T, S, P, issue, s_t)
    else:
        issue()
        k.I("s_barrier", "PA")
        for u in range(1, S): issue()
        k.I(f"s_waitcnt vmcnt({(S-1)*P})"); k.I("s_barrier", "P0")
        lp = k.label("lloop"); nissue = T - S
        k.I(f"s_mov_b32 s{s_t}, 0")
        k.L(lp)
        k.I(f"s_waitcnt vmcnt({(S-2)*P})"); k.I("s_barrier")
        issue()
        k.I(f"s_add_u32 s{s_t}, s{s_t}, 1"); k.I(f"s_cmp_lt_u32 s{s_t}, {nissue}"); k.I(f"s_cbranch_scc1 {lp}")
        for t in range(nissue, T):
            rem = max(T - 1 - (t + 1), 0)
            k.I(f"s_waitcnt vmcnt({rem*P})"); k.I("s_barrier")
    stamp_end(k, 72, 74, 80, s_w, 8, 16)
    k.I("s_endpgm")
    k.L(comp)
    V = Alloc(1, 128, "v")
    t1, t2, t3, t4 = V.get(), V.get(), V.get(), V.get()
    vAc = V.get(); vWc = [V.get() for _ in range(4)]; vRo = V.get()
    acc = V.get(32, 4); fr = [V.get(24, 4), V.get(24, 4)]; res = V.get(16, 4); stt = V.get(8, 2)
    k.I("s_waitcnt lgkmcnt(0)")
    k.srd(sR, 68, 4*MB, RES)
    if final: k.srd(sO, 66, 4*MB)
    else: k.srd(sO, 68, 4*MB, OUT); k.srd(sSt, 68, 256*1024, STO)
    k.I(f"v_and_b32 v{t1}, 15, v0"); k.I(f"v_lshrrev_b32 v{t3}, 4, v0"); k.I(f"v_lshlrev_b32 v{t2}, 4, v{t3}"); k.I(f"v_lshl_add_u32 v{vRo}, v{t1}, 6, v{t2}")
    k.I(f"s_lshl_b32 s{s_offA}, s{s_n}, 18"); k.I(f"s_lshl_b32 s{s_l}, s{s_m}, 13"); k.I(f"s_add_u32 s{s_offA}, s{s_offA}, s{s_l}")
    k.I(f"s_lshl_b32 s{s_l}, s{s_w}, 11"); k.I(f"s_add_u32 s{s_offA}, s{s_offA}, s{s_l}"); k.I(f"s_add_u32 s{s_offW}, s{s_offA}, {SLAB}")
    for kbi in range(2):
        for tb in range(2):
            k.I(f"buffer_load_dwordx4 {v(res+(kbi*2+tb)*4,4)}, v{vRo}, s[{sR}:{sR+3}], s{s_offW if kbi else s_offA} offen offset:{tb*1024}")
    k.I("s_barrier", "PA")
    a_read_base(k, vAc, t1, t2, t3)
    k.I(f"s_lshl_b32 s{s_tmp}, s{s_w}, 11"); k.I(f"v_add_u32 v{vAc}, s{s_tmp}, v{vAc}")
    w_read_parts(k, t3, t4, t1, 7, 128)
    for u in range(4):
        k.I(f"v_xor_b32 v{t2}, {u}, v{t4}")
        k.I(f"v_lshl_add_u32 v{vWc[u]}, v{t2}, 5, v{t3}")
        k.I(f"v_add_u32 v{vWc[u]}, 8192, v{vWc[u]}")
    k.I("s_mov_b32 s76, 0xffff0000")
    k.I("s_waitcnt vmcnt(0)")
    for nb in range(4):
        for tb in range(2):
            c = acc + (nb*2+tb)*4; r = res + ((nb>>1)*2+tb)*4 + (nb&1)*2
            for j in range(2):
                k.I(f"v_lshlrev_b32 v{c+2*j}, 16, v{r+j}"); k.I(f"v_and_b32 v{c+2*j+1}, s76, v{r+j}")
    def reads(st, sub):
        r = []; f = fr[st]; o = sub * SUB
        def rw(nb):
            d = f + (2 + nb) * 4
            return [f"ds_read_b64_tr_b16 {v(d,2)}, v{vWc[nb]} offset:{o}", f"ds_read_b64_tr_b16 {v(d+2,2)}, v{vWc[nb]} offset:{o+2048}"]
        r += rw(0)
        for tb in range(2): r.append(f"ds_read_b128 {v(f+tb*4,4)}, v{vAc} offset:{o+tb*1024}")
        for nb in range(1, 4): r += rw(nb)
        return r
    def mf(st):
        f = fr[st]
        return [mfma(acc+(nb*2+tb)*4, f+(2+nb)*4, f+tb*4, acc+(nb*2+tb)*4) for nb in range(4) for tb in range(2)]
    upd = [slot_delta(s_slot, s_d, SLOT, S), f"v_add_u32 v{vAc}, s{s_d}, v{vAc}"] + [f"v_add_u32 v{vWc[u]}, s{s_d}, v{vWc[u]}" for u in range(4)]
    k.I(f"s_mov_b32 s{s_slot}, 0"); k.I(f"s_mov_b32 s{s_t}, 0")
    k.I("s_barrier", "P0")
    emit(k, reads(0, 0))
    loop = k.label("loop")
    if KS == 1:
        emit(k, upd)
        k.I("s_waitcnt lgkmcnt(0)"); k.I("s_barrier")
        k.L(loop)
        for st in range(2):
            rd = reads(1 - st, 0)
            items = [(i // 2, x) for i, x in enumerate(rd)] + [(5 + i // 3, x) for i, x in enumerate(upd)]
            items += [(7, "s_waitcnt lgkmcnt(0)"), (7, "s_barrier")]
            emit(k, place(mf(st), items))
        k.I(f"s_add_u32 s{s_t}, s{s_t}, 2")
    else:
        assert KS == 2
        k.L(loop)
        k.I("s_waitcnt lgkmcnt(0)")
        rd = reads(1, 1)
        items = [(i // 2, x) for i, x in enumerate(rd)] + [(5 + i // 3, x) for i, x in enumerate(upd)]
        items += [(7, "s_waitcnt lgkmcnt(0)"), (7, "s_barrier")]
        emit(k, place(mf(0), items))
        rd = reads(0, 0)
        items = [(i // 2, x) for i, x in enumerate(rd)]
        emit(k, place(mf(1), items))
        k.I(f"s_add_u32 s{s_t}, s{s_t}, 1")
    k.I(f"s_cmp_lt_u32 s{s_t}, {T}"); k.I(f"s_cbranch_scc1 {loop}")
    k.I("s_waitcnt lgkmcnt(0)")
    k.I("s_nop 7")
    o = fr[0]
    for kbi in range(2):
        for tb in range(2):
            for hb in range(2):
                c = acc + ((kbi*2+hb)*2+tb)*4
                for j in range(2): k.I(f"v_cvt_pk_bf16_f32 v{o+(kbi*2+tb)*4+hb*2+j}, v{c+2*j}, v{c+2*j+1}")
    if not final:
        for kbi in range(2):
            for tb in range(2):
                k.I(f"buffer_store_dwordx4 {v(o+(kbi*2+tb)*4,4)}, v{vRo}, s[{sO}:{sO+3}], s{s_offW if kbi else s_offA} offen offset:{tb*1024} {WT}")
        k.I("s_mov_b32 s76, 0x3f803f80")
        for i in range(8):
            for tb in range(2):
                r = o + ((i>>2)*2+tb)*4 + (i&3); a0 = stt + tb*2
                k.I(f"v_dot2_f32_bf16 v{a0}, v{r}, s76, {'0' if i == 0 else 'v%d' % a0}")
                k.I(f"v_dot2_f32_bf16 v{a0+1}, v{r}, v{r}, {'0' if i == 0 else 'v%d' % (a0+1)}")
        k.I("s_nop 2")
        cross_g2(k, [(stt + tb*2, stt + tb*2 + 1, stt + 4 + tb) for tb in range(2)], "v_add_f32")
        k.I(f"s_lshl_b32 s{s_tmp}, s{s_m}, 14"); k.I(f"s_lshl_b32 s{s_l}, s{s_w}, 12"); k.I(f"s_add_u32 s{s_tmp}, s{s_tmp}, s{s_l}")
        k.I(f"s_lshl_b32 s{s_l}, s{s_n}, 3"); k.I(f"s_add_u32 s{s_tmp}, s{s_tmp}, s{s_l}")
        k.I(f"v_and_b32 v{t1}, 15, v0"); k.I(f"v_lshlrev_b32 v{t1}, 7, v{t1}")
        k.I("v_cmp_gt_u32 vcc, 16, v0"); k.I("s_and_saveexec_b64 s[78:79], vcc")
        for tb in range(2):
            k.I(f"buffer_store_dwordx2 {v(stt+tb*2,2)}, v{t1}, s[{sSt}:{sSt+3}], s{s_tmp} offen offset:{tb*2048} {WT}")
        k.I("s_mov_b64 exec, s[78:79]")
    else:
        for i in range(4):
            r = o + i*4
            k.I(f"v_permlane32_swap_b32 v{r}, v{r+2}"); k.I(f"v_permlane32_swap_b32 v{r+1}, v{r+3}")
        for i in range(4):
            r = o + i*4
            k.I(f"v_permlane16_swap_b32 v{r}, v{r+2}"); k.I(f"v_permlane16_swap_b32 v{r+1}, v{r+3}")
        k.I(f"s_lshl_b32 s{s_tmp}, s{s_m}, 18"); k.I(f"s_lshl_b32 s{s_l}, s{s_w}, 16"); k.I(f"s_add_u32 s{s_tmp}, s{s_tmp}, s{s_l}")
        k.I(f"s_lshl_b32 s{s_l}, s{s_n}, 7"); k.I(f"s_add_u32 s{s_tmp}, s{s_tmp}, s{s_l}"); k.I(f"s_add_u32 s{s_l}, s{s_tmp}, 32768")
        k.I(f"v_and_b32 v{t1}, 15, v0"); k.I(f"v_lshlrev_b32 v{t1}, 11, v{t1}"); k.I(f"v_lshrrev_b32 v{t2}, 4, v0"); k.I(f"v_lshl_add_u32 v{t1}, v{t2}, 4, v{t1}")
        for kbi in range(2):
            for tb in range(2):
                k.I(f"buffer_store_dwordx4 {v(o+(kbi*2+tb)*4,4)}, v{t1}, s[{sO}:{sO+3}], s{s_l if tb else s_tmp} offen offset:{kbi*64} {WT}")
    stamp_end(k, 72, 74, 80, s_w, 8, 16)
    k.L(done)
    k.vgpr = V.hi; k.sgpr = 96
    return k, 256, 512, LDS

def gen_p3(S=4, barpos=26, dma0=27):
    k = Kernel("p3_kernel")
    LDW = 7168; T = 32; ABYTES = 16384; SLOT = 32768; P = 4
    LDS = S * SLOT
    sA, sG, sU, sSt, sCS, sO = 4, 8, 12, 16, 24, 28
    s_w, s_m, s_n, s_t, s_slot, s_tmp, s_offA, s_offW, s_l, s_u, s_ldsA, s_ldsW, s_lslot, s_t2, s_d, s_d2 = range(40, 56)
    done = k.label("done")
    k.I("s_cmp_ge_u32 s2, 224"); k.I(f"s_cbranch_scc1 {done}")
    k.I("s_load_dwordx4 s[64:67], s[0:1], 40")
    k.I("s_load_dwordx2 s[68:69], s[0:1], 80")
    stamp_begin(k, 72)
    k.I("v_lshrrev_b32 v1, 6, v0"); k.I("v_and_b32 v0, 63, v0"); k.I(f"v_readfirstlane_b32 s{s_w}, v1")
    k.I(f"s_and_b32 s{s_tmp}, s2, 7"); k.I(f"s_lshr_b32 s{s_u}, s2, 3")
    k.I(f"s_and_b32 s{s_m}, s{s_tmp}, 1"); k.I(f"s_lshl_b32 s{s_m}, s{s_m}, 2")
    k.I(f"s_and_b32 s{s_l}, s{s_u}, 3"); k.I(f"s_add_u32 s{s_m}, s{s_m}, s{s_l}")
    k.I(f"s_lshr_b32 s{s_n}, s{s_tmp}, 1"); k.I(f"s_mul_i32 s{s_n}, s{s_n}, 7")
    k.I(f"s_lshr_b32 s{s_l}, s{s_u}, 2"); k.I(f"s_add_u32 s{s_n}, s{s_n}, s{s_l}")
    V = Alloc(1, 256, "v")
    t1 = V.get()
    pool = V.get(16, 2)
    ev = [pool + 2*i for i in range(8)]; od = [pool + 2*i + 1 for i in range(8)]
    rs = [(ev[2*tb], ev[2*tb+1]) for tb in range(4)]
    vo = od[0:2]; vAc = od[2]; vWc = od[3:7]; t2 = od[7]
    t3, t4 = V.get(), V.get()
    acc = V.get(128, 4); fr = [V.get(48, 4), V.get(48, 4)]
    xt = V.get(4)
    a_dma_off(k, vo[0], t1, t2)
    k.I(f"s_lshl_b32 s{s_ldsA}, s{s_w}, 11"); k.I(f"v_add_u32 v{vo[0]}, s{s_ldsA}, v{vo[0]}")
    k.I(f"v_lshrrev_b32 v{t1}, 4, v0"); k.I(f"s_lshl_b32 s{s_tmp}, s{s_w}, 2"); k.I(f"v_add_u32 v{t1}, s{s_tmp}, v{t1}")
    k.I(f"v_lshlrev_b32 v{t2}, 1, v{t1}"); k.I(f"v_xor_b32 v{t2}, v{t2}, v0"); k.I(f"v_and_b32 v{t2}, 15, v{t2}"); k.I(f"v_lshlrev_b32 v{t2}, 4, v{t2}")
    k.I(f"s_movk_i32 s{s_tmp}, {LDW}"); k.I(f"v_mul_u32_u24 v{t1}, s{s_tmp}, v{t1}"); k.I(f"v_add_u32 v{vo[1]}, v{t1}, v{t2}")
    k.I(f"s_lshl_b32 s{s_ldsW}, s{s_w}, 10"); k.I(f"s_add_u32 s{s_ldsW}, s{s_ldsW}, {ABYTES}")
    k.I(f"s_lshl_b32 s{s_offA}, s{s_m}, 14"); k.I(f"s_lshl_b32 s{s_offW}, s{s_n}, 8")
    k.I(f"s_mov_b32 s{s_lslot}, 0")
    k.I("s_waitcnt lgkmcnt(0)")
    k.srd(sA, 68, 4*MB, XB1); k.srd(sG, 64, 1024*LDW); k.srd(sU, 66, 1024*LDW)
    def issue_groups():
        return [
            f"s_add_u32 m0, s{s_lslot}, s{s_ldsA}\n    s_add_u32 s{s_t2}, s{s_lslot}, s{s_ldsW}\n    buffer_load_dwordx4 v{vo[0]}, s[{sA}:{sA+3}], s{s_offA} offen lds",
            f"buffer_load_dwordx4 v{vo[0]}, s[{sA}:{sA+3}], s{s_offA} offen offset:1024 lds",
            f"s_mov_b32 m0, s{s_t2}\n    s_add_u32 s{s_offA}, s{s_offA}, {SLAB}\n    buffer_load_dwordx4 v{vo[1]}, s[{sG}:{sG+3}], s{s_offW} offen lds",
            f"s_add_u32 m0, s{s_t2}, 8192\n    s_add_u32 s{s_lslot}, s{s_lslot}, {SLOT}\n    buffer_load_dwordx4 v{vo[1]}, s[{sU}:{sU+3}], s{s_offW} offen lds",
            f"s_add_u32 s{s_offW}, s{s_offW}, {32*LDW}\n    s_cmp_eq_u32 s{s_lslot}, {S*SLOT}\n    s_cselect_b32 s{s_lslot}, 0, s{s_lslot}",
        ]
    emit(k, issue_groups())
    k.I("s_barrier", "order")
    k.srd(sSt, 68, 256*1024, ST1); k.srd(sCS, 68, 40960, CS); k.srd(sO, 68, 112*SLAB, ACT)
    k.I(f"s_lshl_b32 s{s_tmp}, s{s_m}, 8"); k.I(f"s_and_b32 s{s_l}, s{s_w}, 3"); k.I(f"s_lshl_b32 s{s_l}, s{s_l}, 6"); k.I(f"s_add_u32 s{s_tmp}, s{s_tmp}, s{s_l}", "tok0")
    k.I(f"v_and_b32 v{t1}, 15, v0"); k.I(f"v_add_u32 v{t2}, s{s_tmp}, v{t1}"); k.I(f"v_lshlrev_b32 v{t2}, 7, v{t2}")
    k.I(f"v_lshrrev_b32 v{t3}, 4, v0"); k.I(f"v_lshl_add_u32 v{t2}, v{t3}, 5, v{t2}")
    row_stats(k, sSt, t2, 4, fr[1], rs, xt, comp=False)
    for u in range(1, S): emit(k, issue_groups())
    a_read_base(k, vAc, t1, t2, t3)
    k.I(f"s_lshl_b32 s{s_l}, s{s_l}, 6"); k.I(f"v_add_u32 v{vAc}, s{s_l}, v{vAc}")
    w_read_parts(k, t3, t4, t1, 8, 256)
    k.I(f"s_and_b32 s{s_l}, s{s_w}, 4")
    for b in range(4):
        k.I(f"s_add_u32 s{s_t2}, s{s_l}, {b}")
        k.I(f"v_xor_b32 v{t2}, s{s_t2}, v{t4}")
        k.I(f"v_lshl_add_u32 v{vWc[b]}, v{t2}, 5, v{t3}")
        k.I(f"v_add_u32 v{vWc[b]}, {ABYTES}, v{vWc[b]}")
    for i in range(128): k.I(f"v_mov_b32 v{acc+i}, 0")
    def reads(st):
        r = []; f = fr[st]
        def rw(nb):
            mat, b = nb // 4, nb % 4; d = f + (4 + nb) * 4
            return [f"ds_read_b64_tr_b16 {v(d,2)}, v{vWc[b]} offset:{mat*8192}",
                    f"ds_read_b64_tr_b16 {v(d+2,2)}, v{vWc[b]} offset:{mat*8192+4096}"]
        r += rw(0)
        for tb in range(4): r.append(f"ds_read_b128 {v(f+tb*4,4)}, v{vAc} offset:{tb*1024}")
        for nb in range(1, 8): r += rw(nb)
        return r
    def mf(st):
        f = fr[st]
        return [mfma(acc+(nb*4+tb)*4, f+(4+nb)*4, f+tb*4, acc+(nb*4+tb)*4) for nb in range(8) for tb in range(4)]
    upd = [slot_delta(s_slot, s_d, SLOT, S), f"v_add_u32 v{vAc}, s{s_d}, v{vAc}"] + [f"v_add_u32 v{vWc[b]}, s{s_d}, v{vWc[b]}" for b in range(4)]
    k.I(f"s_mov_b32 s{s_slot}, 0"); k.I(f"s_mov_b32 s{s_t}, 0")
    k.I(f"s_waitcnt vmcnt({(S-1)*P})", "step0 + stats landed")
    k.I("s_barrier", "P0")
    emit(k, reads(0)); emit(k, upd)
    row_stats(k, sSt, None, 4, fr[1], rs, xt, load=False)
    k.I(f"s_waitcnt vmcnt({(S-2)*P}) lgkmcnt(0)"); k.I("s_barrier", "barrier(-1)")
    def body(st, dma, wait, rd=True, extra=None):
        items = []
        if rd:
            items += [(i, x) for i, x in enumerate(reads(1 - st))]
            items += [(20 + i, x) for i, x in enumerate(upd)]
        if dma:
            items += [(2 + 5*i, x) for i, x in enumerate(issue_groups())]
        if extra: items += extra
        if wait is not None:
            items += [(barpos, f"s_waitcnt vmcnt({wait}) lgkmcnt(0)"), (barpos, "s_barrier")]
        emit(k, place(mf(st), items))
    nissue = T - S
    assert nissue % 2 == 0
    loop = k.label("loop"); k.L(loop)
    for st in range(2): body(st, True, (S-2)*P)
    k.I(f"s_add_u32 s{s_t}, s{s_t}, 2"); k.I(f"s_cmp_lt_u32 s{s_t}, {nissue}"); k.I(f"s_cbranch_scc1 {loop}")
    cs = None
    for t in range(nissue, T):
        rem = max(T - 1 - (t + 2), 0)
        if t < T - 1:
            body(t % 2, False, rem * P if t < T - 2 else None, True, [(barpos, "s_waitcnt lgkmcnt(0)")] if t == T - 2 else None)
        else:
            cs = fr[1 - t % 2]
            ex = [(0, f"v_lshrrev_b32 v{t1}, 4, v0\n    v_lshlrev_b32 v{t1}, 4, v{t1}\n    s_lshl_b32 s{s_tmp}, s{s_n}, 9\n    s_and_b32 s{s_l}, s{s_w}, 4\n    s_lshl_b32 s{s_l}, s{s_l}, 6\n    s_add_u32 s{s_tmp}, s{s_tmp}, s{s_l}\n    s_add_u32 s{s_tmp}, s{s_tmp}, {CS_G}\n    s_add_u32 s{s_l}, s{s_tmp}, {CS_U-CS_G}")]
            for nb in range(8):
                ex.append((1 + nb, f"buffer_load_dwordx4 {v(cs+nb*4,4)}, v{t1}, s[{sCS}:{sCS+3}], s{s_l if nb >= 4 else s_tmp} offen offset:{(nb&3)*64}"))
            body(t % 2, False, None, False, ex)
    W = fr[(T-1) % 2]
    sig = cs + 32
    c0 = cs + 36
    import struct
    f2u = lambda x: struct.unpack("<I", struct.pack("<f", x))[0]
    import math
    C0 = -2.0 * math.sqrt(2.0 / math.pi) * math.log2(math.e); C1 = C0 * 0.044715
    k.I(f"s_mov_b32 s76, {hex(f2u(C1))}"); k.I(f"s_mov_b32 s77, {hex(f2u(C1))}")
    k.I(f"v_mov_b32 v{c0}, {hex(f2u(C0))}"); k.I(f"v_mov_b32 v{c0+1}, {hex(f2u(C0))}")
    for tb in range(4): k.I(f"v_rcp_f32 v{sig+tb}, v{rs[tb][0]}")
    k.I(f"v_and_b32 v{t2}, 15, v0"); k.I(f"v_lshl_add_u32 v{t2}, v{t2}, 6, v{t1}")
    k.I(f"s_lshl_b32 s{s_tmp}, s{s_n}, 19"); k.I(f"s_and_b32 s{s_l}, s{s_w}, 4"); k.I(f"s_lshl_b32 s{s_l}, s{s_l}, 16"); k.I(f"s_add_u32 s{s_tmp}, s{s_tmp}, s{s_l}")
    k.I(f"s_lshl_b32 s{s_l}, s{s_m}, 14"); k.I(f"s_add_u32 s{s_tmp}, s{s_tmp}, s{s_l}")
    k.I(f"s_and_b32 s{s_l}, s{s_w}, 3"); k.I(f"s_lshl_b32 s{s_l}, s{s_l}, 12"); k.I(f"s_add_u32 s{s_tmp}, s{s_tmp}, s{s_l}")
    k.I("s_waitcnt vmcnt(0)")
    for kbi in range(2):
        G = [(b, tb) for tb in range(4) for b in (2*kbi, 2*kbi+1)]
        g4 = lambda b, tb: acc + (b*4+tb)*4
        u4 = lambda b, tb: acc + ((4+b)*4+tb)*4
        e4 = lambda i: W + i*4
        for b, tb in G:
            for j in (0, 2):
                k.I(pk_fma_b1(g4(b,tb)+j, cs+b*4+j, rs[tb][1]))
        for b, tb in G:
            for j in (0, 2):
                k.I(pk_mul_b1(g4(b,tb)+j, rs[tb][0]))
        for i, (b, tb) in enumerate(G):
            for j in (0, 2): k.I(f"v_pk_mul_f32 {v(e4(i)+j,2)}, {v(g4(b,tb)+j,2)}, {v(g4(b,tb)+j,2)}")
        for i, (b, tb) in enumerate(G):
            for j in (0, 2): k.I(f"v_pk_fma_f32 {v(e4(i)+j,2)}, {v(e4(i)+j,2)}, s[76:77], {v(c0,2)}")
        for i, (b, tb) in enumerate(G):
            for j in (0, 2): k.I(f"v_pk_mul_f32 {v(e4(i)+j,2)}, {v(e4(i)+j,2)}, {v(g4(b,tb)+j,2)}")
        for i, (b, tb) in enumerate(G):
            for j in range(4): k.I(f"v_exp_f32 v{e4(i)+j}, v{e4(i)+j}")
            for j in (0, 2):
                k.I(pk_fma_b1(u4(b,tb)+j, cs+16+b*4+j, rs[tb][1]))
        for i, (b, tb) in enumerate(G):
            for j in range(4): k.I(f"v_fma_f32 v{e4(i)+j}, v{e4(i)+j}, v{sig+tb}, v{sig+tb}")
        for i, (b, tb) in enumerate(G):
            for j in range(4): k.I(f"v_rcp_f32 v{e4(i)+j}, v{e4(i)+j}")
            for j in (0, 2): k.I(f"v_pk_mul_f32 {v(u4(b,tb)+j,2)}, {v(u4(b,tb)+j,2)}, {v(g4(b,tb)+j,2)}")
        for i, (b, tb) in enumerate(G):
            for j in (0, 2): k.I(f"v_pk_mul_f32 {v(u4(b,tb)+j,2)}, {v(u4(b,tb)+j,2)}, {v(e4(i)+j,2)}")
        for tb in range(4):
            o = W + 32 + tb*4
            for hb in range(2):
                b = 2*kbi + hb
                for j in range(2): k.I(f"v_cvt_pk_bf16_f32 v{o+hb*2+j}, v{u4(b,tb)+2*j}, v{u4(b,tb)+2*j+1}")
            k.I(f"buffer_store_dwordx4 {v(o,4)}, v{t2}, s[{sO}:{sO+3}], s{s_tmp} offen offset:{tb*1024} {WT}")
        if kbi == 0: k.I(f"s_add_u32 s{s_tmp}, s{s_tmp}, {SLAB}")
    stamp_end(k, 72, 74, 80, s_w, 8, 16)
    k.L(done)
    k.vgpr = V.hi; k.sgpr = 96
    return k, 224, 512, LDS

HEADER = open("interleave_layers__linear_kernel_hedgehog__geglu_ffn__prompt.s.ref").read().split("; Override launch")[0].rstrip().split("\n")

def build(path, stamp=False, order=None):
    global STAMP
    STAMP = stamp
    K = {}
    K["prep"] = gen_prep()
    K["p1"] = gen_p1()
    K["p15"] = gen_p15()
    K["p2"] = gen_pd("p2_kernel", "wo", 1024, OB, 4*MB, XB0, XB1, ST1)
    K["p3"] = gen_p3()
    K["p4a"] = gen_pd("p4a_kernel", "wd", 3584, ACT, 112*SLAB, XB1, XB0, ST0)
    K["p4b"] = gen_pd("p4b_kernel", "wd", 3584, ACT, 112*SLAB, XB1, None, None, final=True)
    order = order or ["prep", "p1", "p15", "p2", "p3", "p4a", "p1", "p15", "p2", "p3", "p4b"]
    for n, (k, g, b, lds) in K.items():
        k.lines, nn = hazard.run(k.lines)
        print(f"{n}: vgpr {k.vgpr} lds {lds} lines {len(k.lines)} nops inserted {nn}")
    launches = [(K[n][0].name, K[n][1], K[n][2], K[n][3]) for n in order]
    open(path, "w").write(build_file(HEADER, launches, [K[n][0] for n in K]))

if __name__ == "__main__":
    build("interleave_layers__linear_kernel_hedgehog__geglu_ffn__prompt.s")
    build("stamped.s", stamp=True)
```

```python
import sys, struct, math
from dsl import *
import hazard

MB = 1 << 20; KB = 1024
X = [0, 4*MB, 8*MB, 12*MB]
OB = [16*MB, 20*MB]; PHIQ = [24*MB, 32*MB]; ACT = [40*MB, 54*MB]; KVP = [68*MB, 72*MB]
ZP = [76*MB, 76*MB + 128*KB]; ST = [76*MB + 256*KB*(i+1) for i in range(4)]
CS = 77*MB + 256*KB; CSP = 94*MB; CSP2 = 95*MB; WPH = 77*MB + 768*KB; FL = 96*MB
WQP = 79*MB; WOP = 85*MB; WDP = 87*MB
F1 = lambda L: L*32; F15 = lambda L: 64 + L*8; F2 = lambda L: 80 + L*8; F3 = lambda L: 96 + L*8; F4 = 112; FC = 120; F3B = lambda L: 128 + L*8
SLAB = 2048 * 64
WT = "sc0 sc1"
LOG2E = 0x3fb8aa3b
STAMP = False
MEGA = True
f2u = lambda x: struct.unpack("<I", struct.pack("<f", x))[0]
s_w = 40; sFL = 56
FSH = 4
FLB = 256 * KB
FLW = 1
HRED = True
SPIN_LIMIT = 50000
POLLD = 1
POLLS = 4
FINWT = WT

def place(m, items):
    out = []; by = {}
    for g, t in items: by.setdefault(min(g, len(m) - 1), []).append(t)
    out += by.get(-1, [])
    for i, x in enumerate(m):
        out.append(x); out += by.get(i, [])
    return out
def mfma(d, a_, b_, c=None):
    return f"v_mfma_f32_16x16x32_bf16 {v(d,4)}, {v(a_,4)}, {v(b_,4)}, {v(c,4) if c is not None else 0}"
def emit(k, seq):
    for x in seq: k.I(x)
def cross_g2(k, AB, op):
    for A, B, t in AB: k.I(f"v_permlane32_swap_b32 v{A}, v{B}")
    for A, B, t in AB: k.I(f"{op} v{A}, v{A}, v{B}")
    for A, B, t in AB: k.I(f"v_mov_b32 v{t}, v{A}")
    for A, B, t in AB: k.I(f"v_permlane16_swap_b32 v{A}, v{t}")
    for A, B, t in AB: k.I(f"{op} v{A}, v{A}, v{t}")
    for A, B, t in AB: k.I(f"v_mov_b32 v{B}, v{A}")
    for A, B, t in AB: k.I(f"v_permlane32_swap_b32 v{A}, v{B}")

def stamp_begin(k):
    if STAMP:
        k.I("s_memrealtime s[84:85]"); k.I("s_memtime s[92:93]")
        k.I("s_mov_b64 s[86:87], 0"); k.I("s_mov_b64 s[88:89], 0")
def stamp_mid(k, i):
    if STAMP: k.I(f"s_memrealtime s[{84+2*i}:{85+2*i}]")
def stamp_end(k, ph, vt=16):
    if not STAMP: return
    k.I("s_memrealtime s[90:91]"); k.I("s_memtime s[94:95]")
    k.I("s_waitcnt lgkmcnt(0)")
    for i in range(12): k.I(f"v_mov_b32 v{vt+i}, s{84+i}")
    k.I(f"s_lshl_b32 s74, s2, 3"); k.I(f"s_add_u32 s74, s74, s{s_w}"); k.I(f"s_lshl_b32 s74, s74, 6")
    if MEGA and ph: k.I(f"s_add_u32 s74, s74, {ph*0x40000}")
    k.I(f"v_mov_b32 v{vt+12}, s74")
    k.I("s_mov_b64 exec, 1")
    for i in range(3): k.I(f"buffer_store_dwordx4 {v(vt+4*i,4)}, v{vt+12}, s[80:83], 0 offen offset:{16*i}")
    k.I("s_mov_b64 exec, -1")

def kernel_entry(k, ngrid, done):
    k.I(f"s_cmp_ge_u32 s2, {ngrid}"); k.I(f"s_cbranch_scc1 {done}")
    k.I("s_load_dwordx2 s[68:69], s[0:1], 80")
    k.I("s_load_dwordx4 s[64:67], s[0:1], 40")
    k.I("s_load_dwordx4 s[72:75], s[0:1], 56")
    if STAMP: k.I("s_load_dwordx2 s[80:81], s[0:1], 72")
    k.I("v_lshrrev_b32 v1, 6, v0"); k.I("v_and_b32 v0, 63, v0"); k.I(f"v_readfirstlane_b32 s{s_w}, v1")
    k.pending = True
def args_ready(k):
    if getattr(k, "pending", False):
        k.I("s_waitcnt lgkmcnt(0)")
        k.I("s_mov_b64 s[70:71], s[74:75]")
        k.srd(sFL, 68, FLB, FL)
        if STAMP: k.I("s_mov_b32 s82, 0x400000"); k.I("s_mov_b32 s83, 0x00020000")

def poll(k, s_line, cnt, vt, sh=0):
    lp = k.label("poll"); dn = k.label("polled")
    D = POLLD
    ld = lambda i: f"buffer_load_dword v{244+i}, v{vt}, s[{sFL}:{sFL+3}], s{s_line} offen sc1"
    k.I(f"v_lshlrev_b32 v{vt}, {FSH+sh}, v0")
    k.I(f"s_mov_b32 exec_lo, {hex((1 << cnt) - 1)}"); k.I("s_mov_b32 exec_hi, 0")
    k.I("s_mov_b32 s74, 0")
    for i in range(D):
        k.I(ld(i))
        if i < D - 1: k.I(f"s_sleep {POLLS}")
    k.L(lp)
    for i in range(D):
        k.I(f"s_waitcnt vmcnt({D-1})")
        k.I(f"v_cmp_eq_u32 vcc, 0, v{244+i}")
        k.I("s_cmp_eq_u64 vcc, 0"); k.I(f"s_cbranch_scc1 {dn}")
        k.I(ld(i))
    k.I("s_add_u32 s74, s74, 1")
    k.I(f"s_cmp_lt_u32 s74, {SPIN_LIMIT}"); k.I(f"s_cbranch_scc1 {lp}")
    k.L(dn)
    k.I("s_mov_b64 exec, -1")

def flag_store(k):
    k.I("v_mov_b32 v239, 0")
    for i in range(4 if FLW == 4 else 1): k.I(f"v_mov_b32 v{240+i}, 1")
    k.I("s_mov_b64 exec, 1")
    if FLW == 4: k.I(f"buffer_store_dwordx4 v[240:243], v239, s[{sFL}:{sFL+3}], s74 offen {WT}")
    else: k.I(f"buffer_store_dword v240, v239, s[{sFL}:{sFL+3}], s74 offen {WT}")
    k.I("s_mov_b64 exec, -1")

def phase_end(k, ph, flag, nxt, vt=16, force_flag=False):
    k.I("s_waitcnt vmcnt(0) lgkmcnt(0)")
    stamp_end(k, ph, vt)
    if not MEGA and not force_flag:
        k.I("s_endpgm"); return
    if flag is None and nxt is None:
        k.I("s_endpgm"); return
    k.I("s_barrier", "phase end")
    if flag is not None:
        sk = k.label("nf")
        k.I(f"s_cmp_lg_u32 s{s_w}, 0"); k.I(f"s_cbranch_scc1 {sk}")
        flag()
        flag_store(k)
        k.L(sk)
    if nxt is None: k.I("s_endpgm")
    else: k.I(f"s_branch {nxt}")

class VM:
    def __init__(self): self.q = []
    def add(self, tag, n=1): self.q += [tag] * n
    def allowed(self, tags):
        last = max(i for i, t in enumerate(self.q) if t in tags)
        return len(self.q) - 1 - last

def stats_loads(srd, voff, ntb, tmp):
    r = []
    for tb in range(ntb):
        for i in range(4):
            r.append(f"buffer_load_dwordx2 {v(tmp+tb*8+2*i,2)}, v{voff}, s[{srd}:{srd+3}], 0 offen offset:{tb*2048+i*128}")
    return r
def stats_math(k, ntb, tmp):
    R = range(ntb)
    for tb in R:
        t = tmp + tb * 8
        k.I(f"v_pk_add_f32 {v(t,2)}, {v(t,2)}, {v(t+2,2)}"); k.I(f"v_pk_add_f32 {v(t+4,2)}, {v(t+4,2)}, {v(t+6,2)}")
    for tb in R:
        t = tmp + tb * 8
        k.I(f"v_pk_add_f32 {v(t,2)}, {v(t,2)}, {v(t+4,2)}")
    cross_g2(k, [(tmp + tb*8, tmp + tb*8 + 1, tmp + tb*8 + 4) for tb in R], "v_add_f32")
    k.I("s_mov_b32 s74, 0xba800000"); k.I("s_mov_b32 s75, 0x3727c5ac")
    for tb in R:
        t = tmp + tb * 8
        k.I(f"v_mul_f32 v{t+3}, s74, v{t}"); k.I(f"v_mul_f32 v{t+1}, s74, v{t+1}")
    for tb in R:
        t = tmp + tb * 8
        k.I(f"v_fma_f32 v{t+1}, -v{t+3}, v{t+3}, -v{t+1}")
    for tb in R: k.I(f"v_max_f32 v{tmp+tb*8+1}, 0, v{tmp+tb*8+1}")
    for tb in R: k.I(f"v_add_f32 v{tmp+tb*8+1}, s75, v{tmp+tb*8+1}")
    for tb in R: k.I(f"v_rsq_f32 v{tmp+tb*8+2}, v{tmp+tb*8+1}")
def stats_voff(k, dst, t, s_tok0):
    k.I(f"v_and_b32 v{dst}, 15, v0"); k.I(f"v_lshlrev_b32 v{dst}, 3, v{dst}"); k.I(f"s_lshl_b32 s74, s{s_tok0}, 7"); k.I(f"v_add_u32 v{dst}, s74, v{dst}")
    k.I(f"v_lshrrev_b32 v{t}, 4, v0"); k.I(f"v_lshl_add_u32 v{dst}, v{t}, 9, v{dst}")
def a_read_base(k, dst, t1, t2, t3):
    k.I(f"v_and_b32 v{t1}, 15, v0"); k.I(f"v_lshrrev_b32 v{t2}, 2, v{t1}")
    k.I(f"v_sub_u32 v{t2}, 0, v{t2}"); k.I(f"v_and_b32 v{t2}, 3, v{t2}")
    k.I(f"v_lshrrev_b32 v{t3}, 4, v0"); k.I(f"v_xor_b32 v{t2}, v{t2}, v{t3}")
    k.I(f"v_lshlrev_b32 v{t2}, 4, v{t2}"); k.I(f"v_lshl_add_u32 v{dst}, v{t1}, 6, v{t2}")
def a_dma_off(k, dst, t1, t2):
    k.I(f"v_lshrrev_b32 v{t1}, 4, v0"); k.I(f"v_sub_u32 v{t1}, 0, v{t1}")
    k.I(f"v_xor_b32 v{t1}, v{t1}, v0"); k.I(f"v_and_b32 v{t1}, 3, v{t1}"); k.I(f"v_lshlrev_b32 v{t1}, 4, v{t1}")
    k.I(f"v_lshrrev_b32 v{t2}, 2, v0"); k.I(f"v_lshl_add_u32 v{dst}, v{t2}, 6, v{t1}")
def w_read_parts(k, rowpart, sw, t1, rowbytes_log2, swz):
    k.I(f"v_lshrrev_b32 v{t1}, 2, v0"); k.I(f"v_lshlrev_b32 v{rowpart}, {rowbytes_log2}, v{t1}")
    k.I(f"v_and_b32 v{sw}, 3, v0"); k.I(f"v_lshl_add_u32 v{rowpart}, v{sw}, 3, v{rowpart}")
    if swz == 128: k.I(f"v_bfe_u32 v{sw}, v0, 3, 2")
    else: k.I(f"v_bfe_u32 v{sw}, v0, 2, 3")
def slot_delta(s_slot, s_d, SLOT, S):
    return (f"s_add_u32 s{s_d}, s{s_slot}, {SLOT}\n    s_cmp_eq_u32 s{s_d}, {S*SLOT}\n    s_cselect_b32 s{s_d}, 0, s{s_d}\n"
            f"    s_sub_u32 s{s_d}, s{s_d}, s{s_slot}\n    s_add_u32 s{s_slot}, s{s_slot}, s{s_d}")
def slot_adv(s_slot, SLOT, S):
    return f"s_add_u32 s{s_slot}, s{s_slot}, {SLOT}\n    s_cmp_eq_u32 s{s_slot}, {S*SLOT}\n    s_cselect_b32 s{s_slot}, 0, s{s_slot}"
def pk_fma_b1(d, a_, s_): return f"v_pk_fma_f32 {v(d,2)}, {v(a_,2)}, {v(s_,2)}, {v(d,2)} op_sel_hi:[1,0,1]"
def pk_mul_b1(d, s_): return f"v_pk_mul_f32 {v(d,2)}, {v(d,2)}, {v(s_,2)} op_sel_hi:[1,0]"
def tile_mn(k, s_m, s_n, mx, mi, nmul, t, u):
    k.I(f"s_and_b32 s{t}, s2, 7"); k.I(f"s_lshr_b32 s{u}, s2, 3")
    k.I(f"s_and_b32 s{s_m}, s{t}, {(1<<mx)-1}"); k.I(f"s_lshl_b32 s{s_m}, s{s_m}, {mi}")
    k.I(f"s_lshr_b32 s{s_n}, s{t}, {mx}"); k.I(f"s_mul_i32 s{s_n}, s{s_n}, {nmul}")
    k.I(f"s_and_b32 s{t}, s{u}, {(1<<mi)-1}"); k.I(f"s_add_u32 s{s_m}, s{s_m}, s{t}")
    k.I(f"s_lshr_b32 s{t}, s{u}, {mi}"); k.I(f"s_add_u32 s{s_n}, s{s_n}, s{t}")

def pack_units(k, U, sSrc, sDst, s_src, s_srcstep, s_dst, dststep, s_lds, s_ld, vbase, csum=None, jump=0):
    vo, t1, t2, vr = vbase, vbase+1, vbase+2, vbase+3
    fr = (vbase + 8 + 3) // 4 * 4
    k.I(f"v_lshrrev_b32 v{t1}, 3, v0"); k.I(f"v_and_b32 v{t1}, 6, v{t1}")
    k.I(f"v_xor_b32 v{t1}, v{t1}, v0"); k.I(f"v_and_b32 v{t1}, 7, v{t1}"); k.I(f"v_lshlrev_b32 v{t1}, 4, v{t1}")
    k.I(f"v_lshrrev_b32 v{t2}, 3, v0"); k.I(f"v_mul_u32_u24 v{t2}, s{s_ld}, v{t2}"); k.I(f"v_add_u32 v{vo}, v{t1}, v{t2}")
    for i in range(4 * U):
        k.I(f"s_add_u32 m0, s{s_lds}, {i*1024}")
        if i: k.I(f"s_add_u32 s{s_src}, s{s_src}, s{s_srcstep}")
        if i and i % 4 == 0 and jump: k.I(f"s_add_u32 s{s_src}, s{s_src}, {jump}")
        k.I(f"buffer_load_dwordx4 v{vo}, s[{sSrc}:{sSrc+3}], s{s_src} offen {NT} lds")
    w_read_parts(k, t1, t2, vr, 7, 128)
    k.I(f"v_add_u32 v{t1}, s{s_lds}, v{t1}")
    for u in range(4):
        k.I(f"v_xor_b32 v{vr+u}, {u}, v{t2}"); k.I(f"v_lshl_add_u32 v{vr+u}, v{vr+u}, 5, v{t1}")
    k.I(f"v_lshlrev_b32 v{t1}, 4, v0")
    if csum is not None: k.I("s_mov_b32 s78, 0x3f803f80")
    for un in range(U):
        k.I(f"s_waitcnt vmcnt({4*(U-1-un) + 4*un})")
        for b in range(4):
            d = fr + (un*4+b)*4
            k.I(f"ds_read_b64_tr_b16 {v(d,2)}, v{vr+b} offset:{un*4096}"); k.I(f"ds_read_b64_tr_b16 {v(d+2,2)}, v{vr+b} offset:{un*4096+2048}")
        k.I("s_waitcnt lgkmcnt(0)")
        for b in range(4):
            k.I(f"buffer_store_dwordx4 {v(fr+(un*4+b)*4,4)}, v{t1}, s[{sDst}:{sDst+3}], s{s_dst} offen offset:{b*1024} {WT}")
        if un < U - 1: k.I(f"s_add_u32 s{s_dst}, s{s_dst}, {dststep}")
        if csum is not None:
            for j in range(4):
                for b in range(4):
                    first = un == 0 and j == 0
                    k.I(f"v_dot2_f32_bf16 v{csum+b}, v{fr+(un*4+b)*4+j}, s78, {'0' if first else 'v%d' % (csum+b)}")

def gen_prep():
    k = Kernel("prep_kernel")
    done = k.label("done")
    k.I("s_cmp_ge_u32 s2, 512"); k.I(f"s_cbranch_scc1 {done}")
    k.I("s_load_dwordx8 s[32:39], s[0:1], 0")
    k.I("s_load_dwordx4 s[64:67], s[0:1], 40")
    k.I("s_load_dwordx2 s[48:49], s[0:1], 80")
    if STAMP: k.I("s_load_dwordx2 s[80:81], s[0:1], 72"); k.I("s_mov_b32 s82, 0x400000"); k.I("s_mov_b32 s83, 0x00020000")
    stamp_begin(k)
    k.I("v_lshrrev_b32 v1, 6, v0"); k.I("v_and_b32 v0, 63, v0"); k.I(f"v_readfirstlane_b32 s{s_w}, v1")
    k.I(f"s_lshl_b32 s41, s2, 2"); k.I(f"s_add_u32 s41, s41, s{s_w}")
    k.I(f"s_mul_hi_u32 s42, s41, {(1 << 32) // 48 + 1}"); k.I("s_mul_i32 s43, s42, 48"); k.I("s_sub_u32 s43, s41, s43")
    k.I(f"s_mul_i32 s44, s42, {32*6144}"); k.I("s_lshl_b32 s45, s43, 7"); k.I("s_add_u32 s44, s44, s45")
    k.I("s_and_b32 s45, s43, 15"); k.I(f"s_mul_i32 s46, s45, {2*32*6144}"); k.I("s_mul_i32 s45, s42, 6144"); k.I("s_add_u32 s46, s46, s45")
    k.I("s_lshl_b32 s47, s45, 1"); k.I("s_lshl_b32 s45, s43, 8"); k.I("s_add_u32 s47, s47, s45")
    k.I("s_lshr_b32 s45, s43, 4"); k.I("s_lshl_b32 s45, s45, 11"); k.I("s_add_u32 s46, s46, s45")
    k.I("s_sub_u32 s50, s41, 1536"); k.I("s_lshr_b32 s51, s50, 4"); k.I("s_and_b32 s50, s50, 15")
    k.I("s_lshl_b32 s52, s51, 16"); k.I("s_lshl_b32 s45, s50, 7"); k.I("s_add_u32 s52, s52, s45")
    k.I("s_lshl_b32 s53, s50, 17"); k.I("s_lshl_b32 s45, s51, 12"); k.I("s_add_u32 s53, s53, s45"); k.I(f"s_add_u32 s53, s53, {WOP-WQP}")
    k.I("s_cmp_ge_u32 s41, 1536")
    k.I("s_cselect_b32 s44, s52, s44"); k.I("s_cselect_b32 s46, s53, s46")
    k.I(f"s_cselect_b32 s47, {32*12288}, s47")
    k.I(f"s_mov_b32 s62, {32*6144-2048}"); k.I("s_cselect_b32 s62, 0, s62")
    k.I("s_movk_i32 s54, 6144"); k.I("s_cselect_b32 s54, 2048, s54")
    k.I(f"s_mov_b32 s6, {1024*6144}"); k.I(f"s_cselect_b32 s6, {2*MB}, s6"); k.I("s_mov_b32 s7, 0x00020000")
    k.I("s_waitcnt lgkmcnt(0)")
    k.I("s_cselect_b32 s4, s38, s34"); k.I("s_cselect_b32 s5, s39, s35")
    k.I("s_lshl_b32 s55, s54, 3"); k.I("s_add_u32 s62, s62, s46")
    vo, t1, t2, vr = 2, 3, 4, 5
    k.I(f"v_lshrrev_b32 v{t1}, 3, v0"); k.I(f"v_and_b32 v{t1}, 6, v{t1}")
    k.I(f"v_xor_b32 v{t1}, v{t1}, v0"); k.I(f"v_and_b32 v{t1}, 7, v{t1}"); k.I(f"v_lshlrev_b32 v{t1}, 4, v{t1}")
    k.I(f"v_lshrrev_b32 v{t2}, 3, v0"); k.I(f"v_mul_u32_u24 v{t2}, s54, v{t2}"); k.I(f"v_add_u32 v{vo}, v{t1}, v{t2}")
    k.I(f"s_lshl_b32 s60, s{s_w}, 12")
    for i in range(4):
        k.I(f"s_add_u32 m0, s60, {i*1024}")
        if i: k.I("s_add_u32 s44, s44, s55")
        k.I(f"buffer_load_dwordx4 v{vo}, s[4:7], s44 offen {NT} lds")
    k.srd(8, 32, 4*MB)
    k.I("s_lshr_b32 s50, s41, 4"); k.I("s_and_b32 s51, s41, 15")
    k.I("s_lshl_b32 s52, s50, 15"); k.I("s_lshl_b32 s45, s51, 7"); k.I("s_add_u32 s52, s52, s45")
    k.I("v_lshrrev_b32 v9, 2, v0"); k.I("v_and_b32 v10, 3, v0"); k.I("v_lshlrev_b32 v11, 11, v9"); k.I("v_lshl_add_u32 v11, v10, 3, v11")
    XR = 12
    for i in range(4): k.I(f"buffer_load_dwordx2 {v(XR+2*i,2)}, v11, s[8:11], s52 offen offset:{i*32} {NTX}")
    k.I("s_and_b32 s52, s2, 15"); k.I("s_cmp_ge_u32 s52, 8")
    k.I("s_cselect_b32 s12, s66, s64"); k.I("s_cselect_b32 s13, s67, s65"); k.I(f"s_mov_b32 s14, {1024*7168}"); k.I("s_mov_b32 s15, 0x00020000")
    k.I("s_lshr_b32 s53, s2, 4"); k.I("s_lshl_b32 s45, s53, 2"); k.I(f"s_add_u32 s45, s45, s{s_w}"); k.I(f"s_mul_i32 s45, s45, {8*7168}")
    k.I("s_and_b32 s61, s52, 7"); k.I("s_mul_i32 s61, s61, 896"); k.I("s_add_u32 s45, s45, s61")
    k.I("v_min_u32 v20, 55, v0"); k.I("v_lshlrev_b32 v20, 4, v20")
    CR = 24
    for i in range(8):
        k.I(f"buffer_load_dwordx4 {v(CR+i*4,4)}, v20, s[12:15], s45 offen")
        if i < 7: k.I("s_add_u32 s45, s45, 7168")
    k.srd(16, 48, 8*MB, WQP); k.srd(24, 48, 32*12288, CSP)
    w_read_parts(k, t1, t2, vr, 7, 128)
    k.I(f"v_add_u32 v{t1}, s60, v{t1}")
    for u in range(4):
        k.I(f"v_xor_b32 v{vr+u}, {u}, v{t2}"); k.I(f"v_lshl_add_u32 v{vr+u}, v{vr+u}, 5, v{t1}")
    k.I(f"v_lshlrev_b32 v{t1}, 4, v0")
    k.I("s_mov_b32 s78, 0x3f803f80")
    FRp = 56
    k.I("s_waitcnt vmcnt(12)")
    for b in range(4):
        k.I(f"ds_read_b64_tr_b16 {v(FRp+b*4,2)}, v{vr+b}"); k.I(f"ds_read_b64_tr_b16 {v(FRp+b*4+2,2)}, v{vr+b} offset:2048")
    k.I("s_waitcnt lgkmcnt(0)")
    for b in range(4): k.I(f"buffer_store_dwordx4 {v(FRp+b*4,4)}, v{t1}, s[16:19], s{62 if b >= 2 else 46} offen offset:{b*1024} {WT}")
    A4 = 72
    for j in range(4):
        for b in range(4): k.I(f"v_dot2_f32_bf16 v{A4+b}, v{FRp+b*4+j}, s78, {'0' if j == 0 else 'v%d' % (A4+b)}")
    k.srd(8, 48, 4*MB, X[0]); k.srd(28, 48, 256*KB, ST[0])
    k.I("v_lshlrev_b32 v11, 6, v9"); k.I("v_lshl_add_u32 v11, v10, 4, v11")
    k.I("s_lshl_b32 s45, s51, 18"); k.I("s_lshl_b32 s61, s50, 10"); k.I("s_add_u32 s45, s45, s61"); k.I(f"s_add_u32 s61, s45, {SLAB}")
    cross_g2(k, [(A4, A4+1, A4+4), (A4+2, A4+3, A4+5)], "v_add_f32")
    k.I("v_cmp_gt_u32 vcc, 16, v0"); k.I(f"v_cndmask_b32 v{A4+1}, v{A4+1}, v{A4}, vcc")
    k.I("v_cmp_gt_u32 vcc, 48, v0"); k.I(f"v_cndmask_b32 v{A4+3}, v{A4+3}, v{A4+2}, vcc")
    k.I("v_cmp_gt_u32 vcc, 32, v0"); k.I(f"v_cndmask_b32 v{A4+3}, v{A4+3}, v{A4+1}, vcc")
    k.I(f"v_lshlrev_b32 v{t2}, 2, v0")
    k.I(f"buffer_store_dword v{A4+3}, v{t2}, s[24:27], s47 offen {WT}")
    k.I("s_waitcnt vmcnt(13)")
    k.I(f"buffer_store_dwordx4 {v(XR,4)}, v11, s[8:11], s45 offen {WT}")
    k.I(f"buffer_store_dwordx4 {v(XR+4,4)}, v11, s[8:11], s61 offen {WT}")
    for i in range(8):
        k.I(f"v_dot2_f32_bf16 v22, v{XR+i}, s78, {'0' if i == 0 else 'v22'}"); k.I(f"v_dot2_f32_bf16 v23, v{XR+i}, v{XR+i}, {'0' if i == 0 else 'v23'}")
    k.I("s_lshl_b32 s45, s50, 11"); k.I("s_lshl_b32 s61, s51, 7"); k.I("s_add_u32 s45, s45, s61")
    k.I("v_lshlrev_b32 v9, 3, v9")
    for qp in ("[1,0,3,2]", "[2,3,0,1]"):
        for i in (22, 23): k.I(f"v_add_f32_dpp v{i}, v{i}, v{i} quad_perm:{qp} row_mask:0xf bank_mask:0xf")
    k.I("s_mov_b32 exec_lo, 0x11111111"); k.I("s_mov_b32 exec_hi, 0x11111111")
    k.I(f"buffer_store_dwordx2 v[22:23], v9, s[28:31], s45 offen {WT}")
    k.I("s_mov_b64 exec, -1")
    S8 = 56
    k.I("s_mov_b32 s79, 0xffff0000")
    for i in range(8):
        k.I(f"s_waitcnt vmcnt({7-i+8})")
        for j in range(4):
            r = CR + i*4 + j
            if i == 0:
                k.I(f"v_lshlrev_b32 v{S8+2*j}, 16, v{r}"); k.I(f"v_and_b32 v{S8+2*j+1}, s79, v{r}")
            else:
                k.I(f"v_lshlrev_b32 v{64+2*j}, 16, v{r}"); k.I(f"v_and_b32 v{65+2*j}, s79, v{r}")
        if i:
            for j in range(4): k.I(f"v_pk_add_f32 {v(S8+2*j,2)}, {v(S8+2*j,2)}, {v(64+2*j,2)}")
    k.I(f"s_lshl_b32 s45, s{s_w}, 11"); k.I("s_add_u32 s45, s45, 16384"); k.I("v_lshlrev_b32 v9, 5, v0"); k.I("v_add_u32 v10, s45, v9")
    k.I(f"ds_write_b128 v10, {v(S8,4)}"); k.I(f"ds_write_b128 v10, {v(S8+4,4)} offset:16")
    k.I("s_waitcnt lgkmcnt(0)"); k.I("s_barrier")
    k.srd(28, 48, FLB, FL)
    k.I("s_lshl_b32 s45, s41, 8"); k.I("v_mov_b32 v9, 0")
    k.I(f"buffer_store_dword v9, v{t2}, s[28:31], s45 offen {WT}")
    fin = k.label("fin"); nophi = k.label("nophi")
    k.I(f"s_cmp_ge_u32 s{s_w}, 2"); k.I(f"s_cbranch_scc1 {fin}")
    k.srd(24, 48, 32*28672, CSP2)
    k.I(f"s_mul_i32 s45, s{s_w}, 896"); k.I("v_add_u32 v10, s45, v20")
    for w in range(4): k.I(f"ds_read_b128 {v(CR+w*4,4)}, v10 offset:{16384+w*2048}")
    k.I("s_mul_i32 s61, s53, 28672"); k.I("s_mul_i32 s52, s52, 1792"); k.I("s_add_u32 s61, s61, s52"); k.I("s_add_u32 s61, s61, s45")
    k.I("s_waitcnt lgkmcnt(0)")
    for w in range(1, 4):
        for j in (0, 2): k.I(f"v_pk_add_f32 {v(CR+j,2)}, {v(CR+j,2)}, {v(CR+w*4+j,2)}")
    k.I(f"buffer_store_dwordx4 {v(CR,4)}, v20, s[24:27], s61 offen {WT}")
    k.L(fin)
    k.I("s_cmp_ge_u32 s2, 8"); k.I(f"s_cbranch_scc1 {nophi}")
    k.I("s_lshl_b32 s42, s41, 9"); k.I("s_lshl_b32 s41, s41, 11")
    k.I("v_lshrrev_b32 v2, 4, v0"); k.I("v_and_b32 v3, 15, v0"); k.I("v_lshlrev_b32 v3, 1, v3"); k.I("v_lshl_add_u32 v3, v2, 8, v3")
    k.srd(4, 36, 65536); k.srd(8, 48, 65536, WPH)
    for fb in range(2):
        for j in range(8):
            off = ((j >> 2) * 16 + (j & 3)) * 64 + fb * 32
            k.I(f"buffer_load_ushort v{(40 if j & 1 else 32)+fb*4+(j>>1)}, v3, s[4:7], s41 offen offset:{off}")
    k.I("v_lshlrev_b32 v2, 4, v0")
    k.I("s_waitcnt vmcnt(0)")
    for i in range(8): k.I(f"v_lshl_or_b32 v{32+i}, v{40+i}, 16, v{32+i}")
    k.I(f"buffer_store_dwordx4 v[32:35], v2, s[8:11], s41 offen {WT}")
    k.I(f"buffer_store_dwordx4 v[36:39], v2, s[8:11], s41 offen offset:1024 {WT}")
    k.L(nophi)
    if STAMP: k.I("s_waitcnt vmcnt(0)"); stamp_end(k, 0, 48)
    k.L(done)
    k.vgpr = 80; k.sgpr = 100
    return k, 512, 256, 24576

def softmax_pm(k, P, E, M, C, ntb, per_tb):
    R = range(ntb)
    for tb in R:
        p = P[tb]; m = M[tb]
        k.I(f"v_max3_f32 v{m}, v{p}, v{p+1}, v{p+2}"); k.I(f"v_max3_f32 v{m+2}, -v{p}, -v{p+1}, -v{p+2}")
    for o in (3, 5):
        for tb in R:
            p = P[tb]; m = M[tb]
            k.I(f"v_max3_f32 v{m}, v{m}, v{p+o}, v{p+o+1}"); k.I(f"v_max3_f32 v{m+2}, v{m+2}, -v{p+o}, -v{p+o+1}")
    for tb in R:
        p = P[tb]; m = M[tb]
        k.I(f"v_max_f32 v{m}, v{m}, v{p+7}"); k.I(f"v_max_f32_e64 v{m+2}, v{m+2}, -v{p+7}")
    cross_g2(k, [(M[tb], M[tb]+2, M[tb]+1) for tb in R], "v_max_f32")
    for tb in R:
        m = M[tb]
        k.I(f"v_mul_f32 v{m}, v{C[tb]}, v{m}"); k.I(f"v_mul_f32 v{m+2}, v{C[tb]}, v{m+2}")
    for tb in R:
        p = P[tb]; e = E[tb]; m = M[tb]; c = C[tb]
        for j in range(0, 8, 2):
            k.I(f"v_pk_fma_f32 {v(e+j,2)}, {v(p+j,2)}, {v(c,2)}, {v(m+2,2)} op_sel_hi:[1,0,0] neg_lo:[1,0,1] neg_hi:[1,0,1]")
        for j in range(0, 8, 2):
            k.I(f"v_pk_fma_f32 {v(p+j,2)}, {v(p+j,2)}, {v(c,2)}, {v(m,2)} op_sel_hi:[1,0,0] neg_lo:[0,0,1] neg_hi:[0,0,1]")
    for tb in R:
        for j in range(8): k.I(f"v_exp_f32 v{P[tb]+j}, v{P[tb]+j}")
        for j in range(8): k.I(f"v_exp_f32 v{E[tb]+j}, v{E[tb]+j}")
    for tb in R:
        p = P[tb]; e = E[tb]; m = M[tb]
        k.I(f"v_pk_add_f32 {v(m,2)}, {v(p,2)}, {v(p+2,2)}"); k.I(f"v_pk_add_f32 {v(m+2,2)}, {v(e,2)}, {v(e+2,2)}")
    for o in (4, 6):
        for tb in R:
            p = P[tb]; e = E[tb]; m = M[tb]
            k.I(f"v_pk_add_f32 {v(m,2)}, {v(m,2)}, {v(p+o,2)}"); k.I(f"v_pk_add_f32 {v(m+2,2)}, {v(m+2,2)}, {v(e+o,2)}")
    for tb in R:
        m = M[tb]
        k.I(f"v_add_f32 v{m}, v{m}, v{m+1}"); k.I(f"v_add_f32 v{m+2}, v{m+2}, v{m+3}")
    cross_g2(k, [(M[tb], M[tb]+2, M[tb]+1) for tb in R], "v_add_f32")
    for tb in R:
        m = M[tb]
        k.I(f"v_rcp_f32 v{m}, v{m}"); k.I(f"v_rcp_f32 v{m+2}, v{m+2}")
    for tb in R:
        p = P[tb]; e = E[tb]; m = M[tb]
        for j in range(0, 8, 2): k.I(pk_mul_b1(p+j, m))
        for j in range(0, 8, 2): k.I(pk_mul_b1(e+j, m+2))
        for j in range(4): k.I(f"v_cvt_pk_bf16_f32 v{p+j}, v{p+2*j}, v{p+2*j+1}")
        for j in range(4): k.I(f"v_cvt_pk_bf16_f32 v{e+j}, v{e+2*j}, v{e+2*j+1}")
        per_tb(tb)

P1_S = 6
KPRIO = 1
AHEAD = 0
DIAG = False
PREFETCH = 0
CSPREP = True
P3X = ''
NT = 'nt'
NTX = 'nt'
NOCSB = False
NOPACK = False
QGRP = 2
def phase_p1(k, L, ph, nxt, S=None, I0=3, barpos=20):
    S = S or P1_S
    T = 32; ABYTES = 16384; SLOT = ABYTES + 6144; P = 6
    TBL = S * SLOT; CST = TBL + 2048; CNT = CST + 384; LDS = CNT + 64
    QX = 0; KVX = 32768; KFX = KVX + 49152
    sA, sW, sSt, sCS, sPh, sO1, sO2 = 4, 8, 12, 16, 24, 28, 32
    s_m, s_n, s_t, s_slot, s_tmp, s_offA, s_offW, s_l, s_u, s_ldsA, s_ldsW, s_lw, s_t2, s_d = range(41, 55)
    comp = k.label("comp")
    dep = L == 1
    stamp_begin(k)
    tile_mn(k, s_m, s_n, 1, 2, 8, s_tmp, s_u)
    k.I(f"s_and_b32 s{s_lw}, s{s_w}, 3")
    def flag(): k.I(f"s_lshl_b32 s74, s{s_m}, {FSH+5}"); k.I(f"s_lshl_b32 s75, s{s_n}, {FSH}"); k.I("s_add_u32 s74, s74, s75"); k.I(f"s_add_u32 s74, s74, {F15(L) << (FSH+5)}")
    def kv_reduce(vl16, ta, vg16, tb_, LD):
        sK, sZ = 12, 16
        k.srd(sK, 68, 2*MB, KVP[L]); k.srd(sZ, 68, 64*KB, ZP[L])
        k.I(f"s_lshl_b32 s{s_t2}, s{s_n}, {FSH+5}"); k.I(f"s_add_u32 s{s_t2}, s{s_t2}, {F1(L) << (FSH+5)}"); k.I(f"s_lshl_b32 s74, s{s_lw}, {FSH}"); k.I(f"s_add_u32 s{s_t2}, s{s_t2}, s74")
        k.I(f"s_lshl_b32 s{s_u}, s{s_n}, 16"); k.I(f"s_lshl_b32 s74, s{s_lw}, 11"); k.I(f"s_add_u32 s{s_u}, s{s_u}, s74")
        k.I(f"s_lshl_b32 s{s_l}, s{s_n}, 11"); k.I(f"s_lshl_b32 s74, s{s_lw}, 6"); k.I(f"s_add_u32 s{s_l}, s{s_l}, s74")
        k.I(f"v_and_b32 v{ta}, 7, v0"); k.I(f"v_lshl_add_u32 v{ta}, v{ta}, 8, v{vg16}")
        poll(k, s_t2, 8, tb_, 2)
        for mt in range(8):
            for d in range(2): k.I(f"buffer_load_dwordx4 {v(LD+(mt*2+d)*4,4)}, v{vl16}, s[{sK}:{sK+3}], s{s_u} offen offset:{d*1024}")
            if mt < 7: k.I(f"s_add_u32 s{s_u}, s{s_u}, 8192")
        Z = LD + 64
        k.I(f"buffer_load_dwordx4 {v(Z,4)}, v{ta}, s[{sZ}:{sZ+3}], s{s_l} offen")
        k.I(f"s_lshr_b32 s{s_t2}, s{s_lw}, 1"); k.I(f"s_mul_i32 s{s_t2}, s{s_t2}, 3072"); k.I(f"s_and_b32 s74, s{s_lw}, 1"); k.I("s_lshl_b32 s74, s74, 3")
        k.I(f"s_add_u32 s{s_t2}, s{s_t2}, s74"); k.I(f"s_add_u32 s{s_t2}, s{s_t2}, {KFX}"); k.I(f"v_add_u32 v{tb_}, s{s_t2}, v{vl16}")
        for mt in range(1, 8):
            k.I(f"s_waitcnt vmcnt({1 + 2*(7-mt)})")
            for i in range(0, 8, 2): k.I(f"v_pk_add_f32 {v(LD+i,2)}, {v(LD+i,2)}, {v(LD+mt*8+i,2)}")
        for i in range(4): k.I(f"v_cvt_pk_bf16_f32 v{LD+8+i}, v{LD+2*i}, v{LD+2*i+1}")
        k.I(f"ds_write_b64 v{tb_}, {v(LD+8,2)}"); k.I(f"ds_write_b64 v{tb_}, {v(LD+10,2)} offset:1024")
        k.I("s_waitcnt vmcnt(0)")
        for dp in ("row_ror:4", "row_ror:2", "row_ror:1"):
            for j in range(4): k.I(f"v_add_f32_dpp v{Z+j}, v{Z+j}, v{Z+j} {dp} row_mask:0xf bank_mask:0xf")
        for j in range(2): k.I(f"v_cvt_pk_bf16_f32 v{Z+4+j}, v{Z+2*j}, v{Z+2*j+1}")
        k.I(f"ds_write_b64 v{tb_}, {v(Z+4,2)} offset:2048")
        k.I("s_waitcnt lgkmcnt(0)")
    k.I(f"s_cmp_lt_u32 s{s_w}, 4"); k.I(f"s_cbranch_scc1 {comp}")
    voA, voW, t1, t2, t3 = 2, 3, 6, 7, 8
    a_dma_off(k, voA, t1, t2)
    k.I(f"s_lshl_b32 s{s_ldsA}, s{s_lw}, 12"); k.I(f"v_add_u32 v{voA}, s{s_ldsA}, v{voA}")
    k.I(f"s_mul_i32 s{s_ldsW}, s{s_lw}, 1536"); k.I(f"v_lshlrev_b32 v{voW}, 4, v0"); k.I(f"v_add_u32 v{voW}, s{s_ldsW}, v{voW}")
    k.I(f"s_add_u32 s{s_ldsW}, s{s_ldsW}, {ABYTES}")
    k.I(f"s_lshl_b32 s{s_offA}, s{s_m}, 14"); k.I(f"s_mul_i32 s{s_offW}, s{s_n}, {32*6144}")
    args_ready(k)
    k.srd(sA, 68, 4*MB, X[2*L]); k.srd(sW, 68, 6*MB, WQP)
    vm = VM()
    def issueA(m0, tag):
        k.I(m0(s_ldsA))
        for j in range(4): k.I(f"buffer_load_dwordx4 v{voA}, s[{sA}:{sA+3}], s{s_offA} offen offset:{j*1024} lds")
        k.I(f"s_add_u32 s{s_offA}, s{s_offA}, {SLAB}"); vm.add(tag, 4)
    def issueW(m0, tag):
        k.I(m0(s_ldsW))
        k.I(f"buffer_load_dwordx4 v{voW}, s[{sW}:{sW+3}], s{s_offW} offen lds")
        k.I("s_mov_b32 exec_hi, 0")
        k.I(f"buffer_load_dwordx4 v{voW}, s[{sW}:{sW+3}], s{s_offW} offen offset:1024 lds")
        k.I("s_mov_b32 exec_hi, -1")
        k.I(f"s_add_u32 s{s_offW}, s{s_offW}, 6144"); vm.add(tag, 2)
    fixed = lambda u: (lambda r: f"s_add_u32 m0, s{r}, {u*SLOT}")
    dyn = lambda r: f"s_add_u32 m0, s{s_slot}, s{r}"
    def issue(tag):
        issueW(dyn, tag); issueA(dyn, tag); k.I(slot_adv(s_slot, SLOT, S))
    stamp_mid(k, 1)
    if dep:
        for u in range(I0): issueW(fixed(u), u)
        sk = k.label("np")
        k.I(f"s_cmp_lg_u32 s{s_w}, 4"); k.I(f"s_cbranch_scc1 {sk}")
        k.I(f"s_lshl_b32 s{s_tmp}, s{s_m}, {FSH+5}"); k.I(f"s_add_u32 s{s_tmp}, s{s_tmp}, {F4 << (FSH+5)}")
        poll(k, s_tmp, 32, t1)
        k.L(sk)
        k.I("s_barrier", "PA")
        for u in range(I0): issueA(fixed(u), u)
    else:
        issueW(fixed(0), 0); issueA(fixed(0), 0)
        k.I("s_barrier", "PA")
        for u in range(1, I0): issueW(fixed(u), u); issueA(fixed(u), u)
    k.I(f"s_mov_b32 s{s_slot}, {I0*SLOT}")
    hst = 16; hcp = 96; hw = 56; hg = 128
    k.srd(sSt, 68, 256*KB, ST[2*L]); k.srd(sCS, 68, 32*12288, CSP); k.srd(sPh, 68, 65536, WPH); k.srd(sO1, 68, 4*MB, OB[L])
    k.I(f"s_lshl_b32 s{s_tmp}, s{s_m}, 8"); k.I(f"s_lshl_b32 s{s_l}, s{s_lw}, 6"); k.I(f"s_add_u32 s{s_tmp}, s{s_tmp}, s{s_l}")
    stats_voff(k, t1, t2, s_tmp)
    k.I(f"v_add_u32 v9, 4096, v{t1}")
    k.I(f"v_lshrrev_b32 v{t2}, 3, v0"); k.I(f"v_mul_u32_u24 v{t2}, {4*12288}, v{t2}"); k.I(f"v_and_b32 v{t3}, 7, v0"); k.I(f"v_lshl_add_u32 v{t2}, v{t3}, 4, v{t2}")
    k.I(f"s_min_u32 s{s_l}, s{s_lw}, 2"); k.I(f"s_lshl_b32 s{s_tmp}, s{s_l}, 12"); k.I(f"s_lshl_b32 s{s_t2}, s{s_n}, 7"); k.I(f"s_add_u32 s{s_tmp}, s{s_tmp}, s{s_t2}")
    k.I(f"s_waitcnt vmcnt({vm.allowed([0])})"); k.I("s_barrier", "P0")
    stamp_mid(k, 2)
    issue(I0)
    k.I(f"s_waitcnt vmcnt({vm.allowed([1])})"); k.I("s_barrier", "B(-1)")
    issued = I0 + 1
    t = 0
    XT = 5
    while True:
        n = 2 if (issued + 1 <= t + S and t >= 2 and (t - 2) % 3 == 0) else 1
        for _ in range(n): issue(issued); issued += 1
        if t == 0:
            emit(k, stats_loads(sSt, t1, 2, hst)); emit(k, stats_loads(sSt, 9, 2, hst + 16)); vm.add("x", 16)
        if t == 1:
            for i in range(4):
                k.I(f"buffer_load_dwordx4 {v(hcp+i*4,4)}, v{t2}, s[{sCS}:{sCS+3}], s{s_tmp} offen")
                if i < 3: k.I(f"s_add_u32 s{s_tmp}, s{s_tmp}, 12288")
            k.I(f"v_lshlrev_b32 v{t3}, 4, v0"); k.I(f"s_lshl_b32 s{s_tmp}, s{s_n}, 11")
            k.I(f"buffer_load_dwordx4 {v(hw,4)}, v{t3}, s[{sPh}:{sPh+3}], s{s_tmp} offen")
            k.I(f"buffer_load_dwordx4 {v(hw+4,4)}, v{t3}, s[{sPh}:{sPh+3}], s{s_tmp} offen offset:1024")
            vm.add("x", 6)
        if t == 3 and L == 0:
            k.srd(sO2, 68, 32*28672, CSP2)
            k.I(f"s_lshl_b32 s62, s2, 2"); k.I(f"s_add_u32 s62, s62, s{s_lw}"); k.I("s_lshl_b32 s62, s62, 8")
            k.I("s_cmp_lt_u32 s62, 28672"); k.I(f"s_cselect_b32 s62, s62, {32*28672}")
            k.I("v_lshrrev_b32 v10, 4, v0"); k.I(f"v_mul_u32_u24 v10, {8*28672}, v10")
            k.I("v_and_b32 v11, 15, v0"); k.I("v_lshl_add_u32 v10, v11, 4, v10"); k.I("s_mov_b32 s63, s62")
            for i in range(8):
                k.I(f"buffer_load_dwordx4 {v(hg+i*4,4)}, v10, s[{sO2}:{sO2+3}], s63 offen")
                if i < 7: k.I("s_add_u32 s63, s63, 28672")
            vm.add("x", 8)
        w_ = vm.allowed([t+2] + (['x'] if t == XT else []))
        assert w_ <= 63
        k.I(f"s_waitcnt vmcnt({w_})")
        if t == XT:
            stats_math(k, 4, hst)
            for i in range(1, 4):
                for j in (0, 2): k.I(f"v_pk_add_f32 {v(hcp+j,2)}, {v(hcp+j,2)}, {v(hcp+i*4+j,2)}")
            for j in range(4): k.I(f"v_add_f32_dpp v{hcp+j}, v{hcp+j}, v{hcp+j} row_ror:8 row_mask:0xf bank_mask:0xf")
            cross_g2(k, [(hcp, hcp+1, hcp+4), (hcp+2, hcp+3, hcp+5)], "v_add_f32")
            if L == 0:
                for i in range(1, 8):
                    for j in (0, 2): k.I(f"v_pk_add_f32 {v(hg+j,2)}, {v(hg+j,2)}, {v(hg+i*4+j,2)}")
                cross_g2(k, [(hg, hg+1, hg+4), (hg+2, hg+3, hg+5)], "v_add_f32")
                k.srd(sO2, 68, 28672, CS)
                k.I("v_lshlrev_b32 v11, 4, v11"); k.I("s_mov_b64 exec, 0xffff")
                k.I(f"buffer_store_dwordx4 {v(hg,4)}, v11, s[{sO2}:{sO2+3}], s62 offen {WT}")
                k.I("s_mov_b64 exec, -1"); vm.add("y", 1)
            k.I(f"s_lshl_b32 s{s_tmp}, s{s_lw}, 8"); k.I(f"s_add_u32 s{s_tmp}, s{s_tmp}, {TBL}")
            k.I(f"v_and_b32 v{t1}, 15, v0"); k.I(f"v_lshlrev_b32 v{t1}, 2, v{t1}"); k.I(f"v_add_u32 v{t1}, s{s_tmp}, v{t1}")
            for tb in range(4):
                k.I(f"ds_write_b32 v{t1}, v{hst+tb*8+2} offset:{tb*64}"); k.I(f"ds_write_b32 v{t1}, v{hst+tb*8+3} offset:{tb*64+1024}")
            k.I(f"s_lshl_b32 s{s_tmp}, s{s_l}, 7"); k.I(f"s_add_u32 s{s_tmp}, s{s_tmp}, {CST}")
            k.I(f"v_and_b32 v{t2}, 7, v0"); k.I(f"v_lshlrev_b32 v{t2}, 4, v{t2}"); k.I(f"v_add_u32 v{t2}, s{s_tmp}, v{t2}")
            k.I(f"ds_write_b128 v{t2}, {v(hcp,4)}")
            k.I(f"v_mov_b32 v{t2}, {CNT}"); k.I("v_mov_b32 v9, 0"); k.I(f"ds_write_b32 v{t2}, v9")
            k.I("s_waitcnt lgkmcnt(0)")
        k.I("s_barrier")
        t += 1
        if t > XT and issued == t + S: break
    lead = issued - t; nloop = T - issued
    lp = k.label("lloop")
    k.I(f"s_mov_b32 s{s_t}, 0")
    k.L(lp)
    issue(-1)
    k.I(f"s_waitcnt vmcnt({(lead-2)*P})"); k.I("s_barrier")
    k.I(f"s_add_u32 s{s_t}, s{s_t}, 1"); k.I(f"s_cmp_lt_u32 s{s_t}, {nloop}"); k.I(f"s_cbranch_scc1 {lp}")
    for tt in range(t + nloop, T):
        k.I(f"s_waitcnt vmcnt({max(T-1-(tt+2), 0)*P})"); k.I("s_barrier")
    hq = 64; hcs = 48; hqf = 96
    hrs = [(16 + tb*8 + 2, 176 + 2*tb) for tb in range(4)]
    hP = [112 + 8*tb for tb in range(4)]; hE = [64 + 8*tb for tb in range(4)]; hM = [144 + 4*tb for tb in range(4)]
    k.I(f"v_lshrrev_b32 v{t1}, 4, v0"); k.I(f"v_lshlrev_b32 v{t1}, 4, v{t1}"); k.I(f"v_add_u32 v{t2}, {CST}, v{t1}")
    k.I(f"ds_read_b128 {v(hcs,4)}, v{t2}"); k.I(f"ds_read_b128 {v(hcs+4,4)}, v{t2} offset:64")
    for tb in range(4):
        k.I(f"v_mov_b32 v{hrs[tb][1]}, v{hst+tb*8+3}"); k.I(f"v_mul_f32 v{hrs[tb][0]}, {hex(LOG2E)}, v{hrs[tb][0]}")
    k.I(f"s_lshl_b32 s{s_tmp}, s{s_lw}, 13"); k.I(f"v_add_u32 v{t2}, s{s_tmp}, v{t3}")
    k.I(f"v_and_b32 v9, 15, v0"); k.I(f"v_lshl_add_u32 v9, v9, 6, v{t1}")
    k.I(f"s_lshl_b32 s{s_tmp}, s{s_n}, 17"); k.I(f"s_lshl_b32 s{s_l}, s{s_m}, 14"); k.I(f"s_add_u32 s{s_tmp}, s{s_tmp}, s{s_l}")
    k.I(f"s_lshl_b32 s{s_l}, s{s_lw}, 12"); k.I(f"s_add_u32 s{s_tmp}, s{s_tmp}, s{s_l}")
    k.I("s_barrier", "E2")
    for i in range(8): k.I(f"ds_read_b128 {v(hq+((i%2)*4+i//2)*4,4)}, v{t2} offset:{QX+((i%2)*4+i//2)*1024}")
    for tb in range(4):
        k.I(f"s_waitcnt lgkmcnt({6-2*tb})")
        for b in range(2):
            for j in (0, 2): k.I(pk_fma_b1(hq+(b*4+tb)*4+j, hcs+b*4+j, hrs[tb][1]))
        for b in range(2):
            for j in range(2):
                a4 = hq + (b*4+tb)*4
                k.I(f"v_cvt_pk_bf16_f32 v{hqf+tb*4+b*2+j}, v{a4+2*j}, v{a4+2*j+1}")
        if tb:
            for fb in range(2): k.I(mfma(hP[tb-1] + fb*4, hw + fb*4, hqf + (tb-1)*4))
    for fb in range(2): k.I(mfma(hP[3] + fb*4, hw + fb*4, hqf + 12))
    softmax_pm(k, hP, hE, hM, [r[0] for r in hrs], 4, lambda tb: None)
    if HRED: kv_reduce(t3, 10, t1, 11, 160)
    k.I("s_mov_b32 s76, 0x358637bd"); k.I(f"v_add_u32 v{t2}, {KFX}, v{t3}")
    k.I("s_barrier", "E4")
    KF = 16; N = 184
    for i in (2, 0, 1, 5, 3, 4): k.I(f"ds_read_b128 {v(KF+i*4,4)}, v{t2} offset:{i*1024}")
    k.I("s_waitcnt lgkmcnt(3)")
    for sg in range(2):
        if sg: k.I("s_waitcnt lgkmcnt(0)")
        for d in (2, 0, 1):
            for tb in range(4):
                c = N + (tb*3+d)*4
                k.I(mfma(c, KF + (sg*3+d)*4, hE[tb] if sg else hP[tb], c if sg else None))
    for tb in range(4): k.I(f"v_add_f32 v{N+(tb*3+2)*4}, s76, v{N+(tb*3+2)*4}")
    for tb in range(4): k.I(f"v_rcp_f32 v{N+(tb*3+2)*4}, v{N+(tb*3+2)*4}")
    for tb in range(4):
        c = N + tb*12
        for j in range(0, 8, 2): k.I(pk_mul_b1(c+j, c+8))
        for j in range(4): k.I(f"v_cvt_pk_bf16_f32 v{hqf+tb*4+j}, v{c+2*j}, v{c+2*j+1}")
        k.I(f"buffer_store_dwordx4 {v(hqf+tb*4,4)}, v9, s[{sO1}:{sO1+3}], s{s_tmp} offen offset:{tb*1024} {WT}")
    phase_end(k, ph, flag, nxt)

    k.L(comp)
    V = Alloc(1, 244, "v")
    pool = V.get(20, 2)
    ev = [pool + 2*i for i in range(10)]; od = [pool + 2*i + 1 for i in range(10)]
    t1, t2, t3, t4, vAc, vWc = od[0:6]
    rs = [(ev[2*tb], ev[2*tb+1]) for tb in range(4)]; csv = ev[8:10]
    csk = V.get(8, 4); wph = V.get(8, 4)
    acc = V.get(96, 4)
    fr = [V.get(40, 4), V.get(40, 4)]
    xt = V.get(24, 4)
    a_read_base(k, vAc, t1, t2, t3)
    k.I(f"s_lshl_b32 s{s_tmp}, s{s_w}, 12"); k.I(f"v_add_u32 v{vAc}, s{s_tmp}, v{vAc}")
    k.I(f"v_lshlrev_b32 v{t1}, 4, v0"); k.I(f"v_add_u32 v{vWc}, {ABYTES}, v{t1}")
    k.I("s_barrier", "PA")
    args_ready(k); k.pending = False
    k.srd(sPh, 68, 65536, WPH); k.srd(sO1, 68, 2*MB, KVP[L]); k.srd(sO2, 68, 64*KB, ZP[L])
    def reads(st):
        f = fr[st]
        rw = lambda nb: f"ds_read_b128 {v(f+(4+nb)*4,4)}, v{vWc} offset:{nb*1024}"
        return [rw(0)] + [f"ds_read_b128 {v(f+tb*4,4)}, v{vAc} offset:{tb*1024}" for tb in range(4)] + [rw(nb) for nb in range(1, 6)]
    def mf(st, first=False):
        f = fr[st]; r = []
        for nb in range(6):
            for tb in range(4):
                c = acc + (nb*4+tb)*4; wf = f + (4+nb)*4; xf = f + tb*4; cc = None if first else c
                r.append(mfma(c, wf, xf, cc) if nb < 4 else mfma(c, xf, wf, cc))
        return r
    upd = [slot_delta(s_slot, s_d, SLOT, S), f"v_add_u32 v{vAc}, s{s_d}, v{vAc}", f"v_add_u32 v{vWc}, s{s_d}, v{vWc}"]
    def body(st, first=False, extra=[]):
        items = [(i, x) for i, x in enumerate(reads(1 - st))]
        items += [(11 + i, x) for i, x in enumerate(upd)] + extra
        items += [(barpos, "s_waitcnt lgkmcnt(0)"), (barpos, "s_barrier")]
        emit(k, place(mf(st, first), items))
    k.I(f"s_mov_b32 s{s_slot}, 0"); k.I(f"s_mov_b32 s{s_t}, 2")
    k.I("s_barrier", "P0")
    stamp_mid(k, 1)
    emit(k, reads(0)); emit(k, upd)
    k.I("s_waitcnt lgkmcnt(0)"); k.I("s_barrier", "B(-1)")
    body(0, True)
    body(1, False, [(21, f"s_lshl_b32 s{s_tmp}, s{s_n}, 11\n    buffer_load_dwordx4 {v(wph,4)}, v{t1}, s[{sPh}:{sPh+3}], s{s_tmp} offen"),
                    (22, f"buffer_load_dwordx4 {v(wph+4,4)}, v{t1}, s[{sPh}:{sPh+3}], s{s_tmp} offen offset:1024")])
    loop = k.label("loop"); k.L(loop)
    body(0); body(1)
    k.I(f"s_add_u32 s{s_t}, s{s_t}, 2"); k.I(f"s_cmp_lt_u32 s{s_t}, {T}"); k.I(f"s_cbranch_scc1 {loop}")
    stamp_mid(k, 2)
    if KPRIO: k.I(f"s_setprio {KPRIO}")
    F = fr[0]; vst = F
    k.I(f"s_lshl_b32 s{s_tmp}, s{s_w}, 13"); k.I(f"v_add_u32 v{t2}, s{s_tmp}, v{t1}")
    for i in range(8): k.I(f"ds_write_b128 v{t2}, {v(acc+i*4,4)} offset:{QX+i*1024}")
    k.I(f"s_lshl_b32 s{s_tmp}, s{s_w}, 8"); k.I(f"s_add_u32 s{s_tmp}, s{s_tmp}, {TBL}")
    k.I(f"v_and_b32 v{t4}, 15, v0"); k.I(f"v_lshlrev_b32 v{t4}, 2, v{t4}"); k.I(f"v_add_u32 v{t2}, s{s_tmp}, v{t4}")
    k.I(f"v_lshrrev_b32 v{t3}, 4, v0"); k.I(f"v_lshlrev_b32 v{t3}, 4, v{t3}"); k.I(f"v_add_u32 v{vAc}, s{s_tmp}, v{t3}")
    k.I(f"v_add_u32 v{vWc}, {CST+128}, v{t3}"); k.I(f"v_add_u32 v{t4}, {CST+256}, v{t4}")
    for tb in range(4):
        k.I(f"ds_read_b32 v{rs[tb][0]}, v{t2} offset:{tb*64}"); k.I(f"ds_read_b32 v{rs[tb][1]}, v{t2} offset:{tb*64+1024}")
    k.I(f"ds_read_b128 {v(csk,4)}, v{vWc}"); k.I(f"ds_read_b128 {v(csk+4,4)}, v{vWc} offset:64")
    k.I("s_waitcnt lgkmcnt(10)"); k.I("s_barrier", "E2")
    k.I(f"ds_read_b32 v{csv[0]}, v{t4}"); k.I(f"ds_read_b32 v{csv[1]}, v{t4} offset:64")
    for tb in range(4):
        k.I(f"ds_read_b128 {v(vst+tb*8,4)}, v{vAc} offset:{tb*64}"); k.I(f"ds_read_b128 {v(vst+tb*8+4,4)}, v{vAc} offset:{tb*64+1024}")
    ak = acc + 32; av = acc + 64
    kf = F + 32
    Pq = [acc + 8*tb for tb in range(4)]
    k.I("s_waitcnt vmcnt(0) lgkmcnt(10)")
    for tb in range(4):
        for b in range(2):
            for j in (0, 2): k.I(pk_fma_b1(ak+(b*4+tb)*4+j, csk+b*4+j, rs[tb][1]))
        for b in range(2):
            for j in range(2):
                a4 = ak + (b*4+tb)*4
                k.I(f"v_cvt_pk_bf16_f32 v{kf+tb*4+b*2+j}, v{a4+2*j}, v{a4+2*j+1}")
        if tb:
            for fb in range(2): k.I(mfma(Pq[tb-1] + fb*4, wph + fb*4, kf + (tb-1)*4))
    for tb in range(4): k.I(f"v_mul_f32 v{rs[tb][0]}, {hex(LOG2E)}, v{rs[tb][0]}")
    for fb in range(2): k.I(mfma(Pq[3] + fb*4, wph + fb*4, kf + 12))
    k.I("s_waitcnt lgkmcnt(0)")
    for d in range(2):
        for tb in range(4):
            for j in (0, 2): k.I(pk_fma_b1(av+(d*4+tb)*4+j, vst+tb*8+4+j, csv[d]))
    for d in range(2):
        for tb in range(4):
            a4 = av + (d*4+tb)*4
            for j in (0, 2): k.I(f"v_pk_mul_f32 {v(a4+j,2)}, {v(a4+j,2)}, {v(vst+tb*8+j,2)}")
    vf = F + 48
    for d in range(2):
        for tb in range(4):
            a4 = av + (d*4+tb)*4
            for j in range(2): k.I(f"v_cvt_pk_bf16_f32 v{vf+(d*2+(tb>>1))*4+(tb&1)*2+j}, v{a4+2*j}, v{a4+2*j+1}")
    sel = F + 16; ones = F + 24
    k.I(f"v_and_b32 v{t2}, 15, v0"); k.I(f"v_lshrrev_b32 v{t4}, 2, v{t3}"); k.I(f"v_sub_u32 v{t2}, v{t2}, v{t4}")
    k.I(f"v_mov_b32 v{ones}, 0x3f80"); k.I(f"v_mov_b32 v{ones+1}, 1.0")
    for half in range(2):
        k.I(f"v_cmp_eq_u32 vcc, {2*half}, v{t2}"); k.I(f"v_cndmask_b32 v{sel+half}, 0, v{ones}, vcc")
        k.I(f"v_cmp_eq_u32 vcc, {2*half+1}, v{t2}"); k.I(f"v_cndmask_b32 v{sel+half}, v{sel+half}, v{ones+1}, vcc")
    for i in (2, 3, 4, 5): k.I(f"v_mov_b32 v{sel+i}, 0")
    k.I(f"v_mov_b32 v{sel+6}, v{sel}"); k.I(f"v_mov_b32 v{sel+7}, v{sel+1}")
    for j in range(4): k.I(f"v_mov_b32 v{ones+j}, 0x3f803f80")
    Eq = [ak + 8*tb for tb in range(4)]
    Mq = [F + 4*tb for tb in range(4)]
    Tp = av; Tm = F + 64
    def tr_tb(tb):
        for fb in range(2):
            k.I(mfma(Tp + (fb*4+tb)*4, Pq[tb], sel + fb*4)); k.I(mfma(Tm + (fb*4+tb)*4, Eq[tb], sel + fb*4))
    softmax_pm(k, Pq, Eq, Mq, [r[0] for r in rs], 4, tr_tb)
    TF = [kf, F]
    KVb = lambda sg, fb, d: acc + ((sg*2+fb)*3+d)*4
    for pair in range(2):
        for sg, Tt in enumerate((Tp, Tm)):
            for fb in range(2):
                for tb in (2*pair, 2*pair+1):
                    a4 = Tt + (fb*4+tb)*4
                    for j in range(2): k.I(f"v_cvt_pk_bf16_f32 v{TF[sg]+(fb*2+pair)*4+(tb&1)*2+j}, v{a4+2*j}, v{a4+2*j+1}")
        for sg in range(2):
            for fb in range(2):
                for d in range(3):
                    c = KVb(sg, fb, d)
                    k.I(mfma(c, TF[sg] + (fb*2+pair)*4, vf + (d*2+pair)*4 if d < 2 else ones, c if pair else None))
    k.I(f"s_mul_i32 s{s_tmp}, s{s_w}, 3072"); k.I(f"s_add_u32 s{s_tmp}, s{s_tmp}, {KVX}"); k.I(f"v_add_u32 v{t2}, s{s_tmp}, v{t1}")
    k.I(f"s_mul_i32 s{s_tmp}, s{s_w}, 12288"); k.I(f"s_add_u32 s{s_tmp}, s{s_tmp}, {KVX}"); k.I(f"v_add_u32 v{t4}, s{s_tmp}, v{t1}")
    k.I(f"s_lshl_b32 s{s_t2}, s{s_n}, 3"); k.I(f"s_add_u32 s{s_l}, s{s_t2}, s{s_m}")
    k.I(f"s_lshl_b32 s{s_u}, s{s_l}, 13"); k.I(f"s_lshl_b32 s{s_d}, s{s_w}, 11"); k.I(f"s_add_u32 s{s_u}, s{s_u}, s{s_d}")
    k.I(f"s_lshl_b32 s{s_l}, s{s_l}, 8"); k.I(f"s_lshl_b32 s{s_t}, s{s_w}, 6"); k.I(f"s_add_u32 s{s_l}, s{s_l}, s{s_t}")
    k.I(f"v_mov_b32 v{vAc}, {CNT}"); k.I(f"v_mov_b32 v{vWc}, 1")
    for q in range(4):
        for d in range(3): k.I(f"ds_write_b128 v{t2}, {v(acc+(q*3+d)*4,4)} offset:{q*12288+d*1024}")
    k.I("s_waitcnt lgkmcnt(0)")
    k.I("s_mov_b64 exec, 1"); k.I(f"ds_add_u32 v{vAc}, v{vWc}"); k.I("s_mov_b64 exec, -1")
    sp = k.label("spin"); k.L(sp)
    k.I(f"ds_read_b32 v{vWc}, v{vAc}"); k.I("s_waitcnt lgkmcnt(0)")
    k.I(f"v_readfirstlane_b32 s74, v{vWc}"); k.I("s_cmp_lt_u32 s74, 4"); k.I(f"s_cbranch_scc1 {sp}")
    R4 = acc + 48
    for sw in range(4):
        for d in range(3): k.I(f"ds_read_b128 {v(R4+(sw*3+d)*4,4)}, v{t4} offset:{sw*3072+d*1024}")
    for sw in range(1, 4):
        k.I(f"s_waitcnt lgkmcnt({9-3*sw})")
        for i in range(0, 12, 2): k.I(f"v_pk_add_f32 {v(R4+i,2)}, {v(R4+i,2)}, {v(R4+sw*12+i,2)}")
    for d in range(2): k.I(f"buffer_store_dwordx4 {v(R4+d*4,4)}, v{t1}, s[{sO1}:{sO1+3}], s{s_u} offen offset:{d*1024} {WT}")
    k.I("s_mov_b32 exec_lo, 0x00010001"); k.I("s_mov_b32 exec_hi, 0x00010001")
    k.I(f"buffer_store_dwordx4 {v(R4+8,4)}, v{t3}, s[{sO2}:{sO2+3}], s{s_l} offen {WT}")
    k.I("s_mov_b64 exec, -1")
    k.I(f"s_lshl_b32 s74, s{s_n}, {FSH+5}"); k.I(f"s_add_u32 s74, s74, {F1(L) << (FSH+5)}"); k.I(f"s_lshl_b32 s75, s{s_w}, {FSH}"); k.I("s_add_u32 s74, s74, s75")
    k.I(f"s_lshl_b32 s75, s{s_m}, {FSH+2}"); k.I("s_add_u32 s74, s74, s75")
    k.I("s_waitcnt vmcnt(0)")
    flag_store(k)
    if DIAG: stamp_mid(k, 1)
    k.I("s_setprio 0")
    if not HRED: kv_reduce(t1, t2, t3, t4, acc)
    k.I("s_barrier", "E4")
    phase_end(k, ph, flag, nxt, F)
    return 248, LDS

PD_S = 6; PD_I0 = 3
def phase_pd(k, L, ph, nxt, which):
    S = PD_S; I0 = PD_I0
    if which == 2:
        Woff, K, Aoff, Abytes, RES, OUT, STO, fin_, dline, dcnt = WOP, 1024, OB[L], 4*MB, X[2*L], X[2*L+1], ST[2*L+1], False, F15(L), 32
    else:
        Woff, K, Aoff, Abytes, RES, OUT, STO, fin_, dline, dcnt = WDP, 3584, ACT[L], 112*SLAB, X[2*L+1], X[2], ST[2], L == 1, F3(L), 28
    T = K // 64; SLOT = 24576; P = 6
    LDS = S * SLOT
    sA, sW, sR, sO, sSt = 4, 8, 12, 16, 24
    s_m, s_n, s_t, s_slot, s_tmp, s_offA, s_offW, s_l, s_u, s_ldsA, s_end, s_lw, s_t2, s_d = range(41, 55)
    comp = k.label("comp")
    stamp_begin(k)
    tile_mn(k, s_m, s_n, 2, 2, 8, s_tmp, s_u)
    k.I(f"s_and_b32 s{s_lw}, s{s_w}, 3")
    def flag():
        k.I(f"s_lshl_b32 s74, s{s_m}, {FSH+4}"); k.I(f"s_lshl_b32 s75, s{s_n}, {FSH}"); k.I("s_add_u32 s74, s74, s75"); k.I(f"s_add_u32 s74, s74, {(F2(L) if which == 2 else F4) << (FSH+5)}")
    if fin_: flag = None
    k.I(f"s_cmp_lt_u32 s{s_w}, 4"); k.I(f"s_cbranch_scc1 {comp}")
    voA, voW, t1, t2 = 2, 3, 6, 7
    a_dma_off(k, voA, t1, t2)
    k.I(f"s_lshl_b32 s{s_ldsA}, s{s_lw}, 11"); k.I(f"v_add_u32 v{voA}, s{s_ldsA}, v{voA}")
    k.I(f"v_lshlrev_b32 v{voW}, 4, v0"); k.I(f"v_add_u32 v{voW}, s{s_ldsA}, v{voW}")
    k.I(f"s_lshl_b32 s{s_offA}, s{s_m}, 13"); k.I(f"s_mul_i32 s{s_offW}, s{s_n}, {K*128}")
    k.I(f"s_add_u32 s{s_end}, s{s_ldsA}, {S*SLOT}")
    args_ready(k)
    k.srd(sA, 68, Abytes, Aoff); k.srd(sW, 68, K*2048, Woff)
    vm = VM()
    def issueA(base, off, tag):
        for sub in range(2):
            k.I(f"s_add_u32 m0, s{base}, {off + sub*8192}")
            k.I(f"buffer_load_dwordx4 v{voA}, s[{sA}:{sA+3}], s{s_offA} offen lds")
            k.I(f"buffer_load_dwordx4 v{voA}, s[{sA}:{sA+3}], s{s_offA} offen offset:1024 lds")
            k.I(f"s_add_u32 s{s_offA}, s{s_offA}, {SLAB}")
        vm.add(tag, 4)
    def issueW(base, off, tag):
        k.I(f"s_add_u32 m0, s{base}, {off + 16384}")
        k.I(f"buffer_load_dwordx4 v{voW}, s[{sW}:{sW+3}], s{s_offW} offen lds")
        k.I(f"buffer_load_dwordx4 v{voW}, s[{sW}:{sW+3}], s{s_offW} offen offset:1024 lds")
        k.I(f"s_add_u32 s{s_offW}, s{s_offW}, 8192"); vm.add(tag, 2)
    def issue(tag):
        issueW(s_slot, 0, tag); issueA(s_slot, 0, tag)
        k.I(f"s_add_u32 s{s_slot}, s{s_slot}, {SLOT}"); k.I(f"s_cmp_eq_u32 s{s_slot}, s{s_end}"); k.I(f"s_cselect_b32 s{s_slot}, s{s_ldsA}, s{s_slot}")
    stamp_mid(k, 1)
    t = 0
    if MEGA:
        for u in range(S): issueW(s_ldsA, u*SLOT, u)
        sk = k.label("np")
        k.I(f"s_cmp_lg_u32 s{s_w}, 4"); k.I(f"s_cbranch_scc1 {sk}")
        k.I(f"s_lshr_b32 s{s_tmp}, s{s_m}, 1"); k.I(f"s_lshl_b32 s{s_tmp}, s{s_tmp}, {FSH+5}"); k.I(f"s_add_u32 s{s_tmp}, s{s_tmp}, {dline << (FSH+5)}")
        poll(k, s_tmp, dcnt, t1)
        k.L(sk)
        k.I("s_barrier", "PA")
        for u in range(I0): issueA(s_ldsA, u*SLOT, u)
        k.I(f"s_waitcnt vmcnt({vm.allowed([0])})"); k.I("s_barrier", "P0")
        stamp_mid(k, 2)
        for u in range(I0, S): issueA(s_ldsA, u*SLOT, u)
        k.I(f"s_waitcnt vmcnt({vm.allowed([1])})"); k.I("s_barrier")
        k.I(f"s_mov_b32 s{s_slot}, s{s_ldsA}")
        issued = S; t = 1
        for _ in range(S - 2):
            issue(issued); issued += 1
            k.I(f"s_waitcnt vmcnt({vm.allowed([t+1])})"); k.I("s_barrier"); t += 1
    else:
        k.I(f"s_mov_b32 s{s_slot}, s{s_ldsA}")
        issue(0)
        k.I("s_barrier", "PA")
        for u in range(1, I0): issue(u)
        k.I(f"s_waitcnt vmcnt({vm.allowed([0])})"); k.I("s_barrier", "P0")
        stamp_mid(k, 2)
        issued = I0
        while issued < t + S - 1 or t == 0:
            for _ in range(min(2, t + S - issued)): issue(issued); issued += 1
            k.I(f"s_waitcnt vmcnt({vm.allowed([t+1])})"); k.I("s_barrier"); t += 1
    lead = issued - t; nloop = T - issued
    assert lead == S - 1 and nloop >= 1, (lead, nloop)
    lp = k.label("lloop")
    k.I(f"s_mov_b32 s{s_t}, 0")
    k.L(lp)
    issue(-1)
    k.I(f"s_waitcnt vmcnt({(lead-1)*P})"); k.I("s_barrier")
    k.I(f"s_add_u32 s{s_t}, s{s_t}, 1"); k.I(f"s_cmp_lt_u32 s{s_t}, {nloop}"); k.I(f"s_cbranch_scc1 {lp}")
    for tt in range(t + nloop, T):
        k.I(f"s_waitcnt vmcnt({max(T-1-(tt+1), 0)*P})"); k.I("s_barrier")
    phase_end(k, ph, flag, nxt)
    k.L(comp)
    V = Alloc(1, 128, "v")
    t1, t2, t3, vAc, vWc, vRo = [V.get() for _ in range(6)]
    acc = V.get(32, 4); fr = [V.get(24, 4), V.get(24, 4)]; res = V.get(16, 4); stt = V.get(8, 2)
    k.I(f"v_and_b32 v{t1}, 15, v0"); k.I(f"v_lshrrev_b32 v{t3}, 4, v0"); k.I(f"v_lshlrev_b32 v{t2}, 4, v{t3}"); k.I(f"v_lshl_add_u32 v{vRo}, v{t1}, 6, v{t2}")
    k.I(f"s_lshl_b32 s{s_offA}, s{s_n}, 18"); k.I(f"s_lshl_b32 s{s_l}, s{s_m}, 13"); k.I(f"s_add_u32 s{s_offA}, s{s_offA}, s{s_l}")
    k.I(f"s_lshl_b32 s{s_l}, s{s_w}, 11"); k.I(f"s_add_u32 s{s_offA}, s{s_offA}, s{s_l}"); k.I(f"s_add_u32 s{s_offW}, s{s_offA}, {SLAB}")
    a_read_base(k, vAc, t1, t2, t3)
    k.I(f"v_add_u32 v{vAc}, s{s_l}, v{vAc}")
    k.I(f"v_lshlrev_b32 v{vWc}, 4, v0"); k.I(f"v_add_u32 v{vWc}, 16384, v{vWc}")
    args_ready(k); k.pending = False
    k.srd(sR, 68, 4*MB, RES)
    if fin_: k.srd(sO, 70, 4*MB)
    else: k.srd(sO, 68, 4*MB, OUT); k.srd(sSt, 68, 256*KB, STO)
    if which == 4: k.I("s_waitcnt vmcnt(0)")
    k.I("s_barrier", "PA")
    def reads(st, sub):
        f = fr[st]
        rw = lambda nb: f"ds_read_b128 {v(f+(2+nb)*4,4)}, v{vWc} offset:{sub*4096+nb*1024}"
        return [rw(0)] + [f"ds_read_b128 {v(f+tb*4,4)}, v{vAc} offset:{sub*8192+tb*1024}" for tb in range(2)] + [rw(nb) for nb in range(1, 4)]
    def mf(st, first=False):
        f = fr[st]
        return [mfma(acc+(nb*2+tb)*4, f+(2+nb)*4, f+tb*4, None if first else acc+(nb*2+tb)*4) for nb in range(4) for tb in range(2)]
    upd = [slot_delta(s_slot, s_d, SLOT, S), f"v_add_u32 v{vAc}, s{s_d}, v{vAc}\n    v_add_u32 v{vWc}, s{s_d}, v{vWc}"]
    def body(first=False, extra=[]):
        k.I("s_waitcnt lgkmcnt(0)")
        items = [(i, x) for i, x in enumerate(reads(1, 1))] + [(5, upd[0]), (6, upd[1]), (7, "s_waitcnt lgkmcnt(0)"), (7, "s_barrier")]
        emit(k, place(mf(0, first), items))
        emit(k, place(mf(1), [(i, x) for i, x in enumerate(reads(0, 0))] + extra))
    k.I(f"s_mov_b32 s{s_slot}, 0"); k.I(f"s_mov_b32 s{s_t}, 2")
    k.I("s_barrier", "P0")
    stamp_mid(k, 1)
    emit(k, reads(0, 0))
    if which == 4:
        sk = k.label("nfb")
        k.I(f"s_cmp_lg_u32 s{s_w}, 0"); k.I(f"s_cbranch_scc1 {sk}")
        k.I("s_cmp_lt_u32 s2, 32"); k.I(f"s_cbranch_scc1 {sk}")
        k.I("s_mov_b32 s74, s62")
        flag_store(k)
        k.L(sk)
    body(True)
    body(False, [(4 + i, f"buffer_load_dwordx4 {v(res+i*4,4)}, v{vRo}, s[{sR}:{sR+3}], s{s_offW if i >= 2 else s_offA} offen offset:{(i&1)*1024}") for i in range(4)])
    for lim in ([28 - S - 2, T] if which == 4 else [T]):
        loop = k.label("loop"); k.L(loop)
        body()
        k.I(f"s_add_u32 s{s_t}, s{s_t}, 1"); k.I(f"s_cmp_lt_u32 s{s_t}, {lim}"); k.I(f"s_cbranch_scc1 {loop}")
        if lim != T:
            sk = k.label("npb")
            k.I(f"s_cmp_lg_u32 s{s_w}, 1"); k.I(f"s_cbranch_scc1 {sk}")
            k.I(f"s_lshr_b32 s{s_tmp}, s{s_m}, 1"); k.I(f"s_lshl_b32 s{s_tmp}, s{s_tmp}, {FSH+5}"); k.I(f"s_add_u32 s{s_tmp}, s{s_tmp}, {F3B(L) << (FSH+5)}")
            poll(k, s_tmp, 28, t1)
            k.L(sk)
    stamp_mid(k, 2)
    k.I("s_mov_b32 s76, 0xffff0000")
    k.I("s_waitcnt vmcnt(0) lgkmcnt(0)")
    U = fr[1]; o = fr[0]
    for kbi in range(2):
        for tb in range(2):
            for hb in range(2):
                nb = kbi*2 + hb
                c = acc + (nb*2+tb)*4; r = res + (kbi*2+tb)*4 + hb*2; u = U + ((tb*2+hb) % 4) * 4
                for j in range(2):
                    k.I(f"v_lshlrev_b32 v{u+2*j}, 16, v{r+j}"); k.I(f"v_and_b32 v{u+2*j+1}, s76, v{r+j}")
                for j in (0, 2): k.I(f"v_pk_add_f32 {v(c+j,2)}, {v(c+j,2)}, {v(u+j,2)}")
            for hb in range(2):
                c = acc + ((kbi*2+hb)*2+tb)*4
                for j in range(2): k.I(f"v_cvt_pk_bf16_f32 v{o+(kbi*2+tb)*4+hb*2+j}, v{c+2*j}, v{c+2*j+1}")
            if not fin_:
                k.I(f"buffer_store_dwordx4 {v(o+(kbi*2+tb)*4,4)}, v{vRo}, s[{sO}:{sO+3}], s{s_offW if kbi else s_offA} offen offset:{tb*1024} {WT}")
    if not fin_:
        k.I("s_mov_b32 s76, 0x3f803f80")
        for i in range(8):
            for tb in range(2):
                r = o + ((i>>2)*2+tb)*4 + (i&3); a0 = stt + tb*2
                k.I(f"v_dot2_f32_bf16 v{a0}, v{r}, s76, {'0' if i == 0 else 'v%d' % a0}")
                k.I(f"v_dot2_f32_bf16 v{a0+1}, v{r}, v{r}, {'0' if i == 0 else 'v%d' % (a0+1)}")
        k.I(f"s_lshl_b32 s{s_tmp}, s{s_m}, 14"); k.I(f"s_lshl_b32 s{s_l}, s{s_w}, 12"); k.I(f"s_add_u32 s{s_tmp}, s{s_tmp}, s{s_l}")
        k.I(f"s_lshl_b32 s{s_l}, s{s_n}, 7"); k.I(f"s_add_u32 s{s_tmp}, s{s_tmp}, s{s_l}")
        k.I(f"v_lshlrev_b32 v{t1}, 3, v0")
        cross_g2(k, [(stt + tb*2, stt + tb*2 + 1, stt + 4 + tb) for tb in range(2)], "v_add_f32")
        k.I("s_mov_b64 exec, 0xffff")
        for tb in range(2):
            k.I(f"buffer_store_dwordx2 {v(stt+tb*2,2)}, v{t1}, s[{sSt}:{sSt+3}], s{s_tmp} offen offset:{tb*2048} {WT}")
        k.I("s_mov_b64 exec, -1")
    else:
        k.I(f"s_lshl_b32 s{s_tmp}, s{s_m}, 18"); k.I(f"s_lshl_b32 s{s_l}, s{s_w}, 16"); k.I(f"s_add_u32 s{s_tmp}, s{s_tmp}, s{s_l}")
        k.I(f"s_lshl_b32 s{s_l}, s{s_n}, 7"); k.I(f"s_add_u32 s{s_tmp}, s{s_tmp}, s{s_l}"); k.I(f"s_add_u32 s{s_l}, s{s_tmp}, 32768")
        k.I(f"v_and_b32 v{t1}, 15, v0"); k.I(f"v_lshlrev_b32 v{t1}, 11, v{t1}"); k.I(f"v_lshrrev_b32 v{t2}, 4, v0"); k.I(f"v_lshl_add_u32 v{t1}, v{t2}, 4, v{t1}")
        for i in range(4):
            r = o + i*4
            k.I(f"v_permlane32_swap_b32 v{r}, v{r+2}"); k.I(f"v_permlane32_swap_b32 v{r+1}, v{r+3}")
        for i in range(4):
            r = o + i*4
            k.I(f"v_permlane16_swap_b32 v{r}, v{r+2}"); k.I(f"v_permlane16_swap_b32 v{r+1}, v{r+3}")
        for kbi in range(2):
            for tb in range(2):
                k.I(f"buffer_store_dwordx4 {v(o+(kbi*2+tb)*4,4)}, v{t1}, s[{sO}:{sO+3}], s{s_l if tb else s_tmp} offen offset:{kbi*64} {FINWT}")
    phase_end(k, ph, flag, nxt, fr[1])
    return V.hi, LDS

def phase_p3(k, L, ph, nxt, S=4):
    LDW = 7168; T = 32; ABYTES = 16384; SLOT = 32768; P = 4
    TBL = S * SLOT; CNT3 = 147456; LDS = CNT3 + 64
    sA, sG, sU, sSt, sCS, sO = 4, 8, 12, 16, 24, 28
    s_m, s_n, s_t, s_slot, s_tmp, s_offA, s_offW, s_l, s_u, s_ldsA, s_ldsW, s_lslot, s_t2, s_d, s_b = range(41, 56)
    lside = k.label("side")
    side = L == 0
    incs = side and not CSPREP
    stamp_begin(k)
    if side or MEGA:
        k.I("s_cmp_lt_u32 s2, 32"); k.I(f"s_cbranch_scc1 {lside if side else nxt}")
        k.I(f"s_sub_u32 s{s_b}, s2, 32")
    else:
        k.I(f"s_mov_b32 s{s_b}, s2")
    k.I(f"s_and_b32 s{s_tmp}, s{s_b}, 7"); k.I(f"s_lshr_b32 s{s_u}, s{s_b}, 3")
    k.I(f"s_and_b32 s{s_m}, s{s_tmp}, 1"); k.I(f"s_lshl_b32 s{s_m}, s{s_m}, 2")
    k.I(f"s_and_b32 s{s_l}, s{s_u}, 3"); k.I(f"s_add_u32 s{s_m}, s{s_m}, s{s_l}")
    k.I(f"s_lshr_b32 s{s_n}, s{s_tmp}, 1"); k.I(f"s_mul_i32 s{s_n}, s{s_n}, 7")
    k.I(f"s_lshr_b32 s{s_l}, s{s_u}, 2"); k.I(f"s_add_u32 s{s_n}, s{s_n}, s{s_l}")
    V = Alloc(1, 256, "v")
    t1, t2, t3, t4, voA, voW, vAc = [V.get() for _ in range(7)]
    vWc = [V.get() for _ in range(4)]
    acc = V.get(128, 4); fr = [V.get(48, 4), V.get(48, 4)]
    vfl = V.get(2)
    c8 = V.get(8, 2) if incs else None
    CT = TBL + 2048
    if incs: LDS = CT + 4096
    a_dma_off(k, voA, t1, t2)
    k.I(f"s_lshl_b32 s{s_ldsA}, s{s_w}, 11"); k.I(f"v_add_u32 v{voA}, s{s_ldsA}, v{voA}")
    k.I(f"v_lshrrev_b32 v{t1}, 4, v0"); k.I(f"s_lshl_b32 s{s_tmp}, s{s_w}, 2"); k.I(f"v_add_u32 v{t1}, s{s_tmp}, v{t1}")
    k.I(f"v_lshlrev_b32 v{t2}, 1, v{t1}"); k.I(f"v_xor_b32 v{t2}, v{t2}, v0"); k.I(f"v_and_b32 v{t2}, 15, v{t2}"); k.I(f"v_lshlrev_b32 v{t2}, 4, v{t2}")
    k.I(f"v_mul_u32_u24 v{t1}, {LDW}, v{t1}"); k.I(f"v_add_u32 v{voW}, v{t1}, v{t2}")
    k.I(f"s_lshl_b32 s{s_ldsW}, s{s_w}, 10"); k.I(f"s_add_u32 s{s_ldsW}, s{s_ldsW}, {ABYTES}")
    k.I(f"s_lshl_b32 s{s_offA}, s{s_m}, 14"); k.I(f"s_lshl_b32 s{s_offW}, s{s_n}, 8")
    pend = getattr(k, "pending", False)
    args_ready(k); k.pending = False
    k.srd(sA, 68, 4*MB, X[2*L+1]); k.srd(sG, 64, 1024*LDW); k.srd(sU, 66, 1024*LDW)
    vm = VM()
    def gA(m0): return [f"{m0(s_ldsA, 0)}\n    buffer_load_dwordx4 v{voA}, s[{sA}:{sA+3}], s{s_offA} offen lds",
                        f"buffer_load_dwordx4 v{voA}, s[{sA}:{sA+3}], s{s_offA} offen offset:1024 lds\n    s_add_u32 s{s_offA}, s{s_offA}, {SLAB}"]
    def gW(m0): return [f"{m0(s_ldsW, 0)}\n    buffer_load_dwordx4 v{voW}, s[{sG}:{sG+3}], s{s_offW} offen lds",
                        f"{m0(s_ldsW, 8192)}\n    buffer_load_dwordx4 v{voW}, s[{sU}:{sU+3}], s{s_offW} offen lds\n    s_add_u32 s{s_offW}, s{s_offW}, {32*LDW}"]
    fixed = lambda u: (lambda r, o: f"s_add_u32 m0, s{r}, {u*SLOT+o}")
    def dyn(r, o): return f"s_add_u32 m0, s{s_lslot}, s{r}" if not o else f"s_add_u32 m0, m0, {o}"
    def issue_groups(): return gA(dyn) + gW(dyn) + [slot_adv(s_lslot, SLOT, S)]
    hst = acc + 112
    k.I(f"s_lshl_b32 s{s_tmp}, s{s_m}, 8"); k.I(f"s_lshl_b32 s{s_l}, s{s_w}, 5"); k.I(f"s_add_u32 s{s_tmp}, s{s_tmp}, s{s_l}")
    def setup_reads():
        k.srd(sSt, 68, 256*KB, ST[2*L+1]); k.srd(sCS, 68, 28672, CS); k.srd(sO, 68, 112*SLAB, ACT[L])
        stats_voff(k, vfl, t3, s_tmp)
        a_read_base(k, vAc, t1, t2, t3)
        k.I(f"s_and_b32 s{s_l}, s{s_w}, 3"); k.I(f"s_lshl_b32 s{s_l}, s{s_l}, 12"); k.I(f"v_add_u32 v{vAc}, s{s_l}, v{vAc}")
        w_read_parts(k, t3, t4, t1, 8, 256)
        k.I(f"s_and_b32 s{s_l}, s{s_w}, 4")
        for b in range(4):
            k.I(f"s_add_u32 s{s_t2}, s{s_l}, {b}"); k.I(f"v_xor_b32 v{t2}, s{s_t2}, v{t4}")
            k.I(f"v_lshl_add_u32 v{vWc[b]}, v{t2}, 5, v{t3}"); k.I(f"v_add_u32 v{vWc[b]}, {ABYTES}, v{vWc[b]}")
    if MEGA:
        sk = k.label("np")
        for u in range(3): emit(k, gW(fixed(u))); vm.add(u, 2)
        setup_reads()
        k.I(f"s_cmp_lg_u32 s{s_w}, 7"); k.I(f"s_cbranch_scc1 {sk}")
        k.I(f"s_lshl_b32 s{s_u}, s{s_m}, {FSH+5}"); k.I(f"s_add_u32 s{s_u}, s{s_u}, {F2(L) << (FSH+5)}")
        poll(k, s_u, 32, fr[1])
        k.L(sk)
        k.I("s_barrier", "order")
        for u in range(2): emit(k, gA(fixed(u))); vm.add(u, 2)
        emit(k, stats_loads(sSt, vfl, 2, hst)); vm.add("x", 8)
    else:
        emit(k, gA(fixed(0)) + gW(fixed(0))); vm.add(0, 4)
        k.I("s_barrier", "order")
        emit(k, gA(fixed(1)) + gW(fixed(1))); vm.add(1, 4)
        setup_reads()
        emit(k, stats_loads(sSt, vfl, 2, hst)); vm.add("x", 8)
    def reads(st):
        r = []; f = fr[st]
        def rw(nb):
            mat, b = nb // 4, nb % 4; d = f + (4 + nb) * 4
            return [f"ds_read_b64_tr_b16 {v(d,2)}, v{vWc[b]} offset:{mat*8192}", f"ds_read_b64_tr_b16 {v(d+2,2)}, v{vWc[b]} offset:{mat*8192+4096}"]
        r += rw(0)
        for tb in range(4): r.append(f"ds_read_b128 {v(f+tb*4,4)}, v{vAc} offset:{tb*1024}")
        for nb in range(1, 8): r += rw(nb)
        if P3X == "dupread": r = [x + "\n    " + x for x in r]
        return r
    def mf(st, first=False):
        f = fr[st]
        order = [(nb, tb) for nb in range(8) for tb in range(4)]
        if P3X == "snake": order = [(nb, tb if nb % 2 == 0 else 3 - tb) for nb in range(8) for tb in range(4)]
        if P3X == "tbouter": order = [(nb, tb) for tb in range(4) for nb in range(8)]
        if P3X == "diag": order = [((i + i // 8) % 8, i % 4) for i in range(32)]
        return [mfma(acc+(nb*4+tb)*4, f+(4+nb)*4, f+tb*4, None if first else acc+(nb*4+tb)*4) for nb, tb in order]
    upd = [slot_delta(s_slot, s_d, SLOT, S), f"v_add_u32 v{vAc}, s{s_d}, v{vAc}"] + [f"v_add_u32 v{vWc[b]}, s{s_d}, v{vWc[b]}" for b in range(4)]
    k.I(f"s_mov_b32 s{s_slot}, 0")
    k.I(f"s_waitcnt vmcnt({vm.allowed([0])})"); k.I("s_barrier", "P0")
    stamp_mid(k, 1)
    emit(k, reads(0)); emit(k, upd)
    emit(k, gA(fixed(2))); vm.add(2, 2)
    if not MEGA: emit(k, gW(fixed(2))); vm.add(2, 2)
    k.I(f"s_mov_b32 s{s_lslot}, {3*SLOT}")
    k.I(f"s_waitcnt vmcnt({vm.allowed([1, 'x'])})")
    stats_math(k, 2, hst)
    k.I(f"s_lshl_b32 s{s_tmp}, s{s_w}, 7"); k.I(f"s_add_u32 s{s_tmp}, s{s_tmp}, {TBL}")
    k.I(f"v_and_b32 v{t1}, 15, v0"); k.I(f"v_lshlrev_b32 v{t1}, 2, v{t1}"); k.I(f"v_add_u32 v{t1}, s{s_tmp}, v{t1}")
    for tb in range(2):
        k.I(f"ds_write_b32 v{t1}, v{hst+tb*8+2} offset:{tb*64}"); k.I(f"ds_write_b32 v{t1}, v{hst+tb*8+3} offset:{tb*64+1024}")
    k.I(f"v_mov_b32 v{t1}, {CNT3}"); k.I(f"v_mov_b32 v{t2}, 0"); k.I(f"ds_write_b32 v{t1}, v{t2}")
    k.I("s_waitcnt lgkmcnt(0)"); k.I("s_barrier", "B(-1)")
    s_g, s_one = 60, 61
    if incs:
        k.I(f"s_lshr_b32 s{s_g}, s{s_w}, 2"); k.I(f"s_lshl_b32 s{s_g}, s{s_g}, 1"); k.I(f"s_add_u32 s{s_g}, s{s_g}, s{s_w}"); k.I(f"s_and_b32 s{s_g}, s{s_g}, 3")
        k.I(f"s_mov_b32 s{s_one}, 0x3f803f80")
        for i in range(8): k.I(f"v_mov_b32 v{c8+i}, 0")
    BAR = 26
    def body1(st, ndma, wait, rd, extra, first, cs):
        items = []
        if cs: items += [(i, f"v_dot2_f32_bf16 v{c8+i%8}, v{fr[st]+(4+i%8)*4+i//8}, s{s_one}, v{c8+i%8}") for i in range(32)]
        if rd:
            items += [(i, x) for i, x in enumerate(reads(1 - st))] + [(20 + i // 2, x) for i, x in enumerate(upd)]
        g = []
        for _ in range(ndma): g += issue_groups()
        items += [(2 + (5 if ndma == 1 else 2)*i, x) for i, x in enumerate(g)]
        if extra: items += extra()
        if wait is not None: items += [(BAR, f"s_waitcnt vmcnt({wait}) lgkmcnt(0)"), (BAR, "s_barrier")]
        emit(k, place(mf(st, first), items))
    def body(st, ndma, wait, rd=True, extra=None, first=False):
        if not incs or NOCSB:
            body1(st, ndma, wait, rd, extra, first, False); return
        a_ = k.label("wcs"); b_ = k.label("jcs")
        k.I(f"s_sub_u32 s{s_g}, s{s_g}, 1"); k.I(f"s_cbranch_scc1 {a_}")
        body1(st, ndma, wait, rd, extra, first, False)
        k.I(f"s_branch {b_}")
        k.L(a_)
        k.I(f"s_mov_b32 s{s_g}, 3")
        body1(st, ndma, wait, rd, extra, first, True)
        k.L(b_)
    issued = 3; t = 0
    while issued < t + S or t % 2 or t == 0:
        n = min(2, t + S + 1 - issued)
        for _ in range(n): vm.add(issued, 4); issued += 1
        body(t % 2, n, vm.allowed([t+2]), first=(t == 0))
        t += 1
    nloop = T - issued
    assert nloop % 2 == 0 and issued == t + S
    k.I(f"s_mov_b32 s{s_t}, 0")
    loop = k.label("loop"); k.L(loop)
    for st in range(2): body(st, 1, (S-2)*P)
    k.I(f"s_add_u32 s{s_t}, s{s_t}, 2"); k.I(f"s_cmp_lt_u32 s{s_t}, {nloop}"); k.I(f"s_cbranch_scc1 {loop}")
    slows = []
    for tt in range(t + nloop, T):
        if tt == T - S:
            def ex():
                pr = k.label("pr")
                return [(BAR + 1, f"s_cmp_{'lt' if AHEAD else 'ge'}_u32 s{s_w}, 4\n    s_cbranch_scc1 {pr}\n    s_setprio 2\n{pr}:")]
            body(tt % 2, 0, 0, True, ex)
        elif tt < T - 1:
            def ex():
                e = [(31, "s_waitcnt lgkmcnt(0)")]
                if side and MEGA and tt == T - 3:
                    e.append((24, f"v_and_b32 v{vfl}, 31, v0\n    v_lshlrev_b32 v{vfl}, {FSH}, v{vfl}\n    s_mov_b32 s{s_u}, {FC << (FSH+5)}\n    buffer_load_dword v{vfl+1}, v{vfl}, s[{sFL}:{sFL+3}], s{s_u} offen sc1"))
                if side and MEGA and tt == T - 2:
                    slow = k.label("slowfc"); back = k.label("backfc"); slows.append((slow, back))
                    e.append((28, f"s_waitcnt vmcnt(0)\n    v_cmp_eq_u32 vcc, 0, v{vfl+1}"))
                    e.append((30, f"s_cmp_lg_u64 vcc, 0\n    s_cbranch_scc1 {slow}\n{back}:"))
                return e
            body(tt % 2, 0, None, True, ex)
        else:
            cs = fr[1 - tt % 2]; rsb = cs + 32
            def ex():
                e = [(0, f"v_lshrrev_b32 v{t1}, 4, v0\n    v_lshlrev_b32 v{t1}, 4, v{t1}\n    s_lshl_b32 s{s_tmp}, s{s_n}, 9\n    s_and_b32 s{s_l}, s{s_w}, 4\n    s_lshl_b32 s{s_l}, s{s_l}, 6\n    s_add_u32 s{s_tmp}, s{s_tmp}, s{s_l}\n    s_add_u32 s{s_l}, s{s_tmp}, 14336")]
                if not incs:
                    for nb in range(8):
                        e.append((1 + nb, f"buffer_load_dwordx4 {v(cs+nb*4,4)}, v{t1}, s[{sCS}:{sCS+3}], s{s_l if nb >= 4 else s_tmp} offen offset:{(nb&3)*64}"))
                e.append((10, f"s_and_b32 s{s_u}, s{s_w}, 3\n    s_lshl_b32 s{s_u}, s{s_u}, 8\n    s_add_u32 s{s_u}, s{s_u}, {TBL}\n    v_and_b32 v{t2}, 15, v0\n    v_lshlrev_b32 v{t3}, 2, v{t2}\n    v_add_u32 v{t3}, s{s_u}, v{t3}"))
                for tb in range(4):
                    e.append((11 + tb, f"ds_read_b32 v{rsb+tb*4}, v{t3} offset:{tb*64}\n    ds_read_b32 v{rsb+tb*4+2}, v{t3} offset:{tb*64+1024}"))
                return e
            body(tt % 2, 0, None, False, ex)
    stamp_mid(k, 2)
    k.I("s_setprio 0")
    W = fr[(T-1) % 2]
    if incs:
        k.I("s_nop 2")
        cross_g2(k, [(c8 + 2*i, c8 + 2*i + 1, W + i) for i in range(4)], "v_add_f32")
        k.I(f"s_and_b32 s{s_u}, s{s_w}, 3"); k.I(f"s_lshl_b32 s{s_u}, s{s_u}, 10"); k.I(f"s_and_b32 s{s_t2}, s{s_w}, 4"); k.I(f"s_lshl_b32 s{s_t2}, s{s_t2}, 7")
        k.I(f"s_add_u32 s{s_t2}, s{s_t2}, {CT}"); k.I(f"s_add_u32 s{s_u}, s{s_u}, s{s_t2}")
        k.I(f"v_lshlrev_b32 v{t3}, 2, v{t2}"); k.I(f"v_add_u32 v{t3}, s{s_u}, v{t3}"); k.I(f"v_add_u32 v{t4}, s{s_t2}, v{t1}")
        for i in range(4): k.I(f"ds_write2_b32 v{t3}, v{c8+2*i}, v{c8+2*i+1} offset0:{i*32} offset1:{i*32+16}")
        k.I("s_waitcnt lgkmcnt(0)"); k.I("s_barrier", "cs table")
        for h in range(2):
            for i in range(4):
                nb = h*4 + i
                k.I(f"ds_read_b128 {v(cs+nb*4,4)}, v{t4} offset:{nb*64}")
                for wm in range(1, 4): k.I(f"ds_read_b128 {v(W+(i*3+wm-1)*4,4)}, v{t4} offset:{wm*1024+nb*64}")
            for i in range(4):
                nb = h*4 + i
                k.I(f"s_waitcnt lgkmcnt({12-4*i})")
                for wm in range(1, 4):
                    for j in (0, 2): k.I(f"v_pk_add_f32 {v(cs+nb*4+j,2)}, {v(cs+nb*4+j,2)}, {v(W+(i*3+wm-1)*4+j,2)}")
        sk = k.label("ncsst")
        k.I(f"s_and_b32 s{s_u}, s{s_w}, 3"); k.I(f"s_or_b32 s{s_u}, s{s_u}, s{s_m}"); k.I(f"s_cbranch_scc1 {sk}")
        k.I("s_mov_b32 exec_lo, 0x00010001"); k.I("s_mov_b32 exec_hi, 0x00010001")
        for nb in range(8):
            k.I(f"buffer_store_dwordx4 {v(cs+nb*4,4)}, v{t1}, s[{sCS}:{sCS+3}], s{s_l if nb >= 4 else s_tmp} offen offset:{(nb&3)*64} {WT}")
        k.I("s_mov_b64 exec, -1")
        k.L(sk)
    nm = [rsb + tb*4 + 2 for tb in range(4)]; PA_ = [rsb + tb*4 for tb in range(4)]
    PB_ = [W + 32 + tb*2 for tb in range(4)]; sg2 = [rsb + tb*4 + 1 for tb in range(4)]
    C0 = -2.0 * math.sqrt(2.0 / math.pi) * math.log2(math.e)
    k.I(f"v_lshl_add_u32 v{t2}, v{t2}, 6, v{t1}")
    k.I(f"s_lshl_b32 s{s_tmp}, s{s_n}, 18"); k.I(f"s_lshl_b32 s{s_l}, s{s_m}, 14"); k.I(f"s_add_u32 s{s_tmp}, s{s_tmp}, s{s_l}")
    k.I(f"s_and_b32 s{s_l}, s{s_w}, 3"); k.I(f"s_lshl_b32 s{s_l}, s{s_l}, 12"); k.I(f"s_add_u32 s{s_tmp}, s{s_tmp}, s{s_l}")
    k.I(f"s_and_b32 s{s_l}, s{s_w}, 4"); k.I(f"s_lshl_b32 s{s_l}, s{s_l}, 15"); k.I(f"s_add_u32 s{s_tmp}, s{s_tmp}, s{s_l}")
    k.I(f"v_mov_b32 v{t3}, {CNT3}"); k.I(f"v_mov_b32 v{t4}, 1")
    k.I("s_waitcnt lgkmcnt(0)" if incs else "s_waitcnt vmcnt(0) lgkmcnt(0)")
    for tb in range(4): k.I(f"v_mul_f32 v{sg2[tb]}, v{PA_[tb]}, v{PA_[tb]}")
    for tb in range(4): k.I(f"v_mul_f32 v{PA_[tb]}, {hex(f2u(C0))}, v{PA_[tb]}")
    for tb in range(4): k.I(f"v_mul_f32 v{PB_[tb]}, {hex(f2u(0.044715))}, v{sg2[tb]}")
    for tb in range(4): k.I(f"v_rcp_f32 v{sg2[tb]}, v{sg2[tb]}")
    for tb in range(4): k.I(f"v_mul_f32 v{PB_[tb]}, v{PB_[tb]}, v{PA_[tb]}")
    g4 = lambda b, tb: acc + (b*4+tb)*4
    u4 = lambda b, tb: acc + ((4+b)*4+tb)*4
    for kbi in range(2):
        for th in range(2):
            G = [(b, tb) for tb in (2*th, 2*th+1) for b in (2*kbi, 2*kbi+1)]
            e4 = lambda i: W + (th*4+i)*4
            for b, tb in G:
                for j in (0, 2): k.I(pk_fma_b1(g4(b,tb)+j, cs+b*4+j, nm[tb]))
            for i, (b, tb) in enumerate(G):
                for j in (0, 2): k.I(f"v_pk_mul_f32 {v(e4(i)+j,2)}, {v(g4(b,tb)+j,2)}, {v(g4(b,tb)+j,2)}")
            for i, (b, tb) in enumerate(G):
                for j in (0, 2): k.I(f"v_pk_fma_f32 {v(e4(i)+j,2)}, {v(e4(i)+j,2)}, {v(PB_[tb],2)}, {v(PA_[tb],2)} op_sel_hi:[1,0,0]")
            for i, (b, tb) in enumerate(G):
                for j in (0, 2): k.I(f"v_pk_mul_f32 {v(e4(i)+j,2)}, {v(e4(i)+j,2)}, {v(g4(b,tb)+j,2)}")
            for i, (b, tb) in enumerate(G):
                for j in range(4): k.I(f"v_exp_f32 v{e4(i)+j}, v{e4(i)+j}")
                for j in (0, 2): k.I(pk_fma_b1(u4(b,tb)+j, cs+16+b*4+j, nm[tb]))
            for i, (b, tb) in enumerate(G):
                for j in range(4): k.I(f"v_fma_f32 v{e4(i)+j}, v{e4(i)+j}, v{sg2[tb]}, v{sg2[tb]}")
            for i, (b, tb) in enumerate(G):
                for j in range(4): k.I(f"v_rcp_f32 v{e4(i)+j}, v{e4(i)+j}")
                for j in (0, 2): k.I(f"v_pk_mul_f32 {v(u4(b,tb)+j,2)}, {v(u4(b,tb)+j,2)}, {v(g4(b,tb)+j,2)}")
            for i, (b, tb) in enumerate(G):
                for j in (0, 2): k.I(f"v_pk_mul_f32 {v(u4(b,tb)+j,2)}, {v(u4(b,tb)+j,2)}, {v(e4(i)+j,2)}")
            for tb in (2*th, 2*th+1):
                o = g4(2*kbi, tb)
                for hb in range(2):
                    b = 2*kbi + hb
                    for j in range(2): k.I(f"v_cvt_pk_bf16_f32 v{o+hb*2+j}, v{u4(b,tb)+2*j}, v{u4(b,tb)+2*j+1}")
                k.I(f"buffer_store_dwordx4 {v(o,4)}, v{t2}, s[{sO}:{sO+3}], s{s_tmp} offen offset:{tb*1024} {WT}")
            if kbi == 1 and th == 0:
                k.I("s_waitcnt vmcnt(2)")
                k.I("s_mov_b64 exec, 1"); k.I(f"ds_add_rtn_u32 v{vfl}, v{t3}, v{t4}"); k.I("s_mov_b64 exec, -1")
                k.I(f"s_lshl_b32 s62, s{s_m}, {FSH+5}"); k.I(f"s_lshl_b32 s75, s{s_n}, {FSH}"); k.I("s_add_u32 s62, s62, s75"); k.I(f"s_add_u32 s74, s62, {F3(L) << (FSH+5)}")
                k.I(f"s_add_u32 s62, s62, {F3B(L) << (FSH+5)}")
                sk = k.label("nfa")
                k.I("s_waitcnt lgkmcnt(0)")
                k.I(f"v_readfirstlane_b32 s75, v{vfl}"); k.I("s_cmp_lg_u32 s75, 7"); k.I(f"s_cbranch_scc1 {sk}")
                flag_store(k)
                k.L(sk)
        if kbi == 0: k.I(f"s_add_u32 s{s_tmp}, s{s_tmp}, {56*SLAB}")
    if STAMP: stamp_end(k, ph, W)
    sp = k.label("spin3"); k.L(sp)
    k.I(f"ds_read_b32 v{vfl}, v{t3}"); k.I("s_waitcnt lgkmcnt(0)")
    k.I(f"v_readfirstlane_b32 s75, v{vfl}"); k.I("s_cmp_lt_u32 s75, 8"); k.I(f"s_cbranch_scc1 {sp}")
    k.I(f"s_branch {nxt}")
    if side:
        for slow, back in slows:
            k.L(slow)
            poll(k, s_u, 32, vfl)
            k.I(f"s_branch {back}")
        k.L(lside)
        k.pending = pend
        args_ready(k); k.pending = False
        k.I(f"s_lshl_b32 s41, s2, 3"); k.I(f"s_add_u32 s41, s41, s{s_w}")
        k.I("s_lshr_b32 s42, s41, 4"); k.I("s_and_b32 s41, s41, 15")
        k.I("s_and_b32 s43, s42, 7"); k.I(f"s_mul_i32 s44, s43, {14*65536}"); k.I("s_lshr_b32 s43, s42, 3"); k.I("s_lshl_b32 s43, s43, 16"); k.I("s_add_u32 s44, s44, s43")
        k.I("s_lshl_b32 s43, s41, 7"); k.I("s_add_u32 s44, s44, s43")
        k.I(f"s_movk_i32 s45, {8*2048}"); k.I("s_movk_i32 s47, 2048")
        k.I(f"s_mul_i32 s48, s41, {112*4096}"); k.I(f"s_mul_i32 s43, s42, {7*4096}"); k.I("s_add_u32 s48, s48, s43")
        k.I(f"s_lshl_b32 s46, s{s_w}, 14")
        k.srd(4, 72, 3584*2048); k.srd(8, 68, 7*MB, WDP)
        pack_units(k, 4, 4, 8, 44, 45, 48, 4096, 46, 47, 2, jump=65536)
        k.I(f"s_add_u32 s44, s44, {65536+8*2048}"); k.I("s_add_u32 s48, s48, 4096")
        k.I("s_waitcnt vmcnt(0)")
        pack_units(k, 3, 4, 8, 44, 45, 48, 4096, 46, 47, 2, jump=65536)
        def flagc(): k.I(f"s_lshl_b32 s74, s2, {FSH}"); k.I(f"s_add_u32 s74, s74, {FC << (FSH+5)}")
        if MEGA:
            w2 = k.label("sidewait")
            phase_end(k, ph, flagc, w2)
            k.L(w2)
            k.I(f"s_mov_b32 s41, {FC << (FSH+5)}")
            poll(k, 41, 32, 4)
            k.I(f"s_branch {nxt}")
        else:
            phase_end(k, ph, None, None)
    return V.hi, LDS

HEADER = open("interleave_layers__linear_kernel_hedgehog__geglu_ffn__prompt.s.ref").read().split("; Override launch")[0].rstrip().split("\n")
PHASES = [(0, phase_p1), (2, lambda k, L, ph, nx: phase_pd(k, L, ph, nx, 2)), (3, phase_p3), (4, lambda k, L, ph, nx: phase_pd(k, L, ph, nx, 4))]

def build(path, stamp=False, verbose=False, **glob):
    global STAMP
    STAMP = stamp
    saved = {g: globals()[g] for g in glob}
    globals().update(glob)
    Ks = [gen_prep()]
    k = Kernel("mega_kernel"); done = k.label("done")
    kernel_entry(k, 256, done)
    labs = [f"mega_ph{i}" for i in range(8)] + [None]
    vg = 0; ld = 0
    for i in range(8):
        k.L(labs[i])
        a_, b_ = PHASES[i % 4][1](k, i // 4, (i // 4) * 5 + PHASES[i % 4][0], labs[i+1])
        vg = max(vg, a_); ld = max(ld, b_)
    k.L(done); k.vgpr = vg; k.sgpr = 100
    Ks.append((k, 256, 512, ld))
    for (k, g, b, lds) in Ks:
        k.lines, nn = hazard.run(k.lines)
        if verbose: print(f"{k.name}: vgpr {k.vgpr} lds {lds} lines {len(k.lines)} nops {nn}")
    open(path, "w").write(build_file(HEADER, [(k.name, g, b, lds) for (k, g, b, lds) in Ks], [x[0] for x in Ks]))
    globals().update(saved)

if __name__ == "__main__":
    build("m4.s", stamp=True, verbose=True)
    build("t_mega.s")
```
